```python
import torch

def _softmax(x, axis=-1):
    return torch.softmax(x, dim=axis)
def _gelu(x):
    return torch.nn.functional.gelu(x, approximate="tanh")
def _silu(x):
    return torch.nn.functional.silu(x)
def _sigmoid(x):
    return torch.sigmoid(x)
def _layernorm(x, axis=-1, eps=1e-5):
    m = x.mean(dim=axis, keepdim=True)
    v = x.var(dim=axis, keepdim=True, unbiased=False)
    return (x - m) / torch.sqrt(v + eps)
def _scatter_add(tgt, idx, src, axis=0):
    return tgt.clone().index_add_(axis, idx, src)
def _segment_sum(src, seg, n):
    out = torch.zeros((n,) + src.shape[1:], dtype=src.dtype)
    return out.index_add_(0, seg, src)
def _pad(x, pw):
    flat = tuple(v for pair in reversed(pw) for v in pair)
    return torch.nn.functional.pad(x, flat)

kernel_name = 'parallel_sum__linear_attn_block__dense_activation_mish__prompt'

def setup_inputs():

    _w = (lambda a: (lambda t: t.to(torch.bfloat16) if t.is_floating_point() else t)(torch.as_tensor(a)))
    def _A_setup():
        B, S, D = 1, 2048, 640
        return {
            "x": _w((lambda *s: torch.randn(*s, dtype=torch.bfloat16) * 0.05)(B, S, D)),
            "wqkv": _w((lambda *s: torch.randn(*s, dtype=torch.bfloat16) * 0.1)(D, 3 * D)),
            "wo": _w((lambda *s: torch.randn(*s, dtype=torch.bfloat16) * 0.05)(D, D)),
        }
    _A_in = _A_setup()

    def _B_setup():
        B, S, D, F = 1, 2048, 640, 1536
        return {
            "x": _w((lambda *s: torch.randn(*s, dtype=torch.bfloat16) * 0.05)(B, S, D)),
            "w1": _w((lambda *s: torch.randn(*s, dtype=torch.bfloat16) * 0.8)(D, F) * (D ** -0.5)),
            "b1": _w((lambda *s: torch.randn(*s, dtype=torch.bfloat16) * 0.4)(F)),
            "w2": _w((lambda *s: torch.randn(*s, dtype=torch.bfloat16) * 0.1)(F, D) * (F ** -0.5)),
        }
    _B_in = _B_setup()

    return {
        "A_x": _A_in["x"],
        "A_wqkv": _A_in["wqkv"],
        "A_wo": _A_in["wo"],
        "B_x": _B_in["x"],
        "B_w1": _B_in["w1"],
        "B_b1": _B_in["b1"],
        "B_w2": _B_in["w2"],
    }

def reference(A_x, A_wqkv, A_wo, B_x, B_w1, B_b1, B_w2):
    def _A_ref(x, wqkv, wo):
        B, S, D = x.shape
        H = 32; Dh = D // H
        qkv = (lambda x, *d: x.permute(*d))((x @ wqkv).reshape(B, S, 3, H, Dh), 2, 0, 3, 1, 4)
        q, k, v = qkv[0], qkv[1], qkv[2]
        phi = lambda t: torch.where(t > 0, t + 1, torch.exp(t)) + 1e-6
        pq, pk = phi(q), phi(k)
        kv = torch.einsum("bhsd,bhse->bhde", pk, v)
        z = torch.einsum("bhsd->bhd", pk)
        num = torch.einsum("bhqd,bhde->bhqe", pq, kv)
        den = torch.einsum("bhqd,bhd->bhq", pq, z)[..., None] + 1e-6
        o = num / den
        return (lambda x, *d: x.permute(*d))(o, 0, 2, 1, 3).reshape(B, S, D) @ wo

    def _B_ref(x, w1, b1, w2):
        h = torch.einsum("bsd,df->bsf", x, w1) + b1
        sp = torch.log1p(torch.exp(-torch.abs(h))) + torch.where(h > 0, h, torch.zeros_like(h))
        act = h * torch.tanh(sp)
        return torch.einsum("bsf,fd->bsd", act, w2)

    x = A_x
    xn = _layernorm(x, axis=-1)
    return x + _A_ref(xn, A_wqkv, A_wo) + _B_ref(xn, B_w1, B_b1, B_w2)
```

```python
import re
VCC=(1106,1107); M0=1124; EXEC=(1126,1127)
TRANS=('v_exp_f32','v_rcp_f32','v_rsq_f32','v_sqrt_f32','v_log_f32','v_rcp_iflag_f32','v_sin_f32','v_cos_f32')
_reg=re.compile(r'^(-|\|)?(abs\()?([vas])(\d+|\[(\d+):(\d+)\])\)?\|?$')
def regs_of(tok):
    t=tok.strip()
    if t=='vcc': return set(VCC)
    if t=='vcc_lo': return {VCC[0]}
    if t=='vcc_hi': return {VCC[1]}
    if t=='exec': return set(EXEC)
    if t=='exec_lo': return {EXEC[0]}
    if t=='exec_hi': return {EXEC[1]}
    if t=='m0': return {M0}
    m=_reg.match(t)
    if not m: return set()
    base={'v':0,'a':256,'s':1000}[m.group(3)]
    if m.group(5) is not None: return set(range(base+int(m.group(5)), base+int(m.group(6))+1))
    return {base+int(m.group(4))}
class Ins:
    __slots__=('text','op','ops','kind','w','r','tags','passes','wide','cdst','srcC','dpp','sdwa','nstates','vsgpr_w')
    def __init__(s,text):
        s.text=text; s.tags=set(); s.passes=0; s.wide=False; s.srcC=set(); s.dpp=False; s.sdwa=False; s.nstates=1
        body=text
        if ';#' in text:
            body,t=text.split(';#',1)
            for kv in t.split(): s.tags.add(kv)
        body=body.split(';')[0].strip()
        s.text=body
        parts=body.split(None,1)
        s.op=parts[0]
        rest=parts[1] if len(parts)>1 else ''
        ops=[];cur='';d=0
        for ch in rest:
            if ch in '[(': d+=1
            if ch in '])': d-=1
            if ch==',' and d==0: ops.append(cur.strip());cur=''
            else: cur+=ch
        if cur.strip(): ops.append(cur.strip())
        mods=''
        if ops:
            lp=ops[-1].split(None,1)
            if len(lp)>1 and not ops[-1].startswith('hwreg'):
                ops[-1]=lp[0]; mods=lp[1]
        s.ops=ops
        op=s.op
        R=[regs_of(o) for o in ops]
        allr=lambda L:set().union(*L) if L else set()
        s.w=set(); s.r=set()
        if op.endswith(':'): s.kind='label'; s.nstates=0
        elif op.startswith('.') : s.kind='dir'; s.nstates=0
        elif op.startswith('@'): s.kind='pseudo'; s.nstates=0
        elif op.startswith('v_mfma'):
            s.kind='mfma'; s.w=R[0]; s.r=allr(R[1:]); s.srcC=R[3]; s.passes=8 if '32x32' in op else 4
        elif op.startswith('v_'):
            s.kind='trans' if op.replace('_e32','').replace('_e64','') in TRANS else 'valu'
            if op.startswith('v_dot'): s.kind='dot'
            if 'permlane' in op and 'swap' in op: s.w=allr(R[:2]); s.r=allr(R[:2]); s.kind='perm'
            elif op.startswith('v_cmpx'): s.w=set(EXEC)|R[0]; s.r=allr(R[1:])
            elif op.startswith(('v_add_co','v_sub_co','v_addc_co','v_subb_co','v_subrev_co','v_mad_u64_u32','v_div_scale')): s.w=allr(R[:2]); s.r=allr(R[2:])
            else:
                s.w=R[0]; s.r=allr(R[1:])
                if op.startswith(('v_fmac','v_mac','v_dot2c','v_writelane','v_fmaak')) and not op.startswith('v_fmaak'): s.r|=R[0]
                if op.startswith('v_cndmask') and len(ops)==3: s.r|=set(VCC)
            if 'row_' in mods or 'quad_perm' in mods or 'wave_' in mods or op.endswith('_dpp'): s.dpp=True; s.r|=s.w
            if 'dst_sel' in mods or 'op_sel' in mods and op.startswith('v_cvt'): s.sdwa=True; s.r|=s.w
            s.r|=set(EXEC)
        elif op.startswith('ds_'):
            s.kind='ds'
            if op.startswith(('ds_read','ds_bpermute','ds_permute','ds_swizzle')): s.w=R[0]; s.r=allr(R[1:])
            else: s.r=allr(R)
        elif op.startswith(('buffer_','global_')):
            s.kind='vm'
            islds=(' lds' in ' '+mods) or '_lds_' in op
            if op.startswith(('buffer_wbl2','buffer_inv')): pass
            elif 'load' in op and not islds: s.w=R[0]; s.r=allr(R[1:])
            elif 'atomic' in op and 'sc0' in mods: s.w=R[0]; s.r=allr(R[1:]) if op.startswith('global') else allr(R)
            else: s.r=allr(R)
            if islds: s.r|={M0}; s.tags.add('dma')
            if 'store' in op and ('x4' in op or 'x3' in op):
                s.wide=True; s.cdst=R[0] if op.startswith('buffer') else R[1]
        elif op.startswith(('s_load','s_buffer_load','s_memtime','s_memrealtime')):
            s.kind='smem'; s.w=R[0]; s.r=allr(R[1:])
        elif op=='s_nop': s.kind='nop'; s.nstates=int(ops[0],0)+1
        elif op.startswith('s_'):
            s.kind='salu'
            if op.startswith(('s_cmp','s_waitcnt','s_barrier','s_cbranch','s_branch','s_setprio','s_sleep','s_endpgm','s_bitcmp')): s.r=allr(R)
            else:
                s.w=R[0]; s.r=allr(R[1:])
                if 'saveexec' in op: s.w|=set(EXEC); s.r|=set(EXEC)
            if op.startswith('s_cbranch_vcc'): s.r|=set(VCC)
        else: raise ValueError('unknown instr: '+text)
class Prog:
    def __init__(s): s.items=[]
    def __call__(s,text):
        for ln in text.split('\n'):
            ln=ln.strip()
            if not ln or ln.startswith(';'): continue
            s.items.append(Ins(ln))
    def extend(s,lst):
        for x in lst:
            if isinstance(x,Ins): s.items.append(x)
            else: s(x)
def isv(x): return x<512
def finalize(items, check_only_warn=False):
    out=[]; vmq=[]; lgq=[]; hist=[]
    stats={'nop':0,'wait':0}
    def emit(i):
        out.append(i.text if i.kind not in('label','dir') else i.text)
        hist.append(i)
        if len(hist)>40: hist.pop(0)
    def dowait(vm=None,lg=None):
        nonlocal vmq,lgq
        p=[]
        if vm is not None:
            vm=min(vm,63)
            p.append(f'vmcnt({vm})'); vmq=vmq[len(vmq)-vm:] if vm>0 else []
        if lg is not None:
            lg=min(lg,15)
            p.append(f'lgkmcnt({lg})'); lgq=lgq[len(lgq)-lg:] if lg>0 else []
        if p: emit(Ins('s_waitcnt '+' '.join(p))); stats['wait']+=1
    for ins in items:
        if ins.kind=='pseudo':
            if ins.op=='@vmwait':
                need=None; tg=set(ins.ops[0].split('+'))
                for k,o in enumerate(vmq):
                    if o.tags&tg: need=k
                if need is not None: dowait(vm=len(vmq)-1-need)
            elif ins.op=='@lgwait':
                need=None; tg=set(ins.ops[0].split('+'))
                for k,o in enumerate(lgq):
                    if o.tags&tg: need=k
                if need is not None: dowait(lg=(0 if any(o.kind=='smem' for o in lgq) else len(lgq)-1-need))
            elif ins.op=='@wait':
                a=ins.ops[0]
                vm=0 if (a in('vm','all') and vmq) else None
                lg=0 if (a in('lg','all') and lgq) else None
                dowait(vm,lg)
            elif ins.op=='@forcewait':
                dowait(0,0)
            elif ins.op=='@nohist': hist.clear()
            else: raise ValueError(ins.text)
            continue
        if ins.kind=='salu' and ins.op=='s_waitcnt':
            m=re.search(r'vmcnt\((\d+)\)',ins.text);
            if m:
                n=int(m.group(1)); vmq=vmq[len(vmq)-n:] if n>0 and len(vmq)>n else (vmq if n>0 else [])
            m=re.search(r'lgkmcnt\((\d+)\)',ins.text)
            if m:
                n=int(m.group(1)); lgq=lgq[len(lgq)-n:] if n>0 and len(lgq)>n else (lgq if n>0 else [])
            emit(ins); continue
        touch=ins.r|ins.w
        nv=None; nl=None
        for k,o in enumerate(vmq):
            if o.w&touch: nv=len(vmq)-1-k
        for k,o in enumerate(lgq):
            if o.w&touch: nl=len(lgq)-1-k
        if nl is not None and any(o.kind=='smem' for o in lgq): nl=0
        if ins.kind=='vm' and len(vmq)>=63 and nv is None: nv=62
        if nv is not None or nl is not None: dowait(nv,nl)
        need=0; dist=0
        for h in reversed(hist):
            if h.kind in('label','dir'): continue
            req=0
            hv=h.kind in('valu','trans','dot','perm')
            cv=ins.kind in('valu','trans','dot','perm')
            wv={x for x in h.w if isv(x)}; ws_={x for x in h.w if not isv(x)}
            if hv:
                if ins.kind=='mfma' and wv&ins.r: req=max(req,2)
                if ins.kind=='mfma' and ws_&set(EXEC): req=max(req,4)
                if h.kind=='trans' and cv and wv&ins.r: req=max(req,1)
                if h.kind=='dot' and (cv or ins.kind in('mfma','vm','ds')) and wv&touch and not(ins.op==h.op and not (wv&set().union(*[regs_of(o) for o in ins.ops[1:3]]))): req=max(req,3)
                if ins.kind=='vm' and ws_&ins.r: req=max(req,5)
                if cv and (ws_-set(EXEC))&ins.r: req=max(req,4 if ins.op.startswith(('v_readlane','v_writelane')) else 2)
                if ins.op.startswith(('v_readfirstlane','v_readlane')) and wv&ins.r: req=max(req,1)
                if (ins.dpp or ins.kind=='perm') and wv&ins.r: req=max(req,2)
                if ins.dpp and ws_&set(EXEC): req=max(req,5)
                if h.sdwa and cv and wv&touch: req=max(req,1)
                if ins.op.startswith('s_cbranch_vcc') and ws_&set(VCC): req=max(req,5)
                if ins.kind=='salu' and ws_&ins.r: req=max(req,1)
            if h.kind=='mfma':
                big=h.passes==8
                if ins.kind=='mfma':
                    ab=regs_of(ins.ops[1])|regs_of(ins.ops[2])
                    if h.w&ab: req=max(req,12 if big else 8)
                    if h.w&ins.srcC and not(h.w==ins.srcC and h.passes==ins.passes): req=max(req,10 if big else 6)
                    if h.w&ins.w and not (h.w==ins.w and h.passes==ins.passes and ins.srcC==ins.w): req=max(req,10 if big else 6)
                elif cv or ins.kind in('vm','ds'):
                    if h.w&touch: req=max(req,12 if big else 8)
                    if cv and h.srcC&ins.w: req=max(req,7 if big else 3)
            if h.kind=='salu' and M0 in h.w and ins.kind=='vm' and M0 in ins.r: req=max(req,1)
            if h.kind=='salu' and ws_&set(EXEC) and ins.dpp: req=max(req,1)
            if h.kind=='vm' and h.wide and (h.cdst&ins.w): req=max(req,2)
            if req>dist: need=max(need,req-dist)
            dist+=h.nstates
            if dist>=20: break
        while need>0:
            n=min(need,16); emit(Ins(f's_nop {n-1}')); need-=n; stats['nop']+=1
        emit(ins)
        if ins.kind=='vm': vmq.append(ins)
        elif ins.kind in('ds','smem'):
            lgq.append(ins)
    return out,stats
```

```python
from asmlib import *
KN='parallel_sum__linear_attn_block__dense_activation_mish__prompt_kernel'
WS_FLAG=0
WS_WQ=0x10000;  WQ_J=163840; WQ_QOFF=122880
WS_WC=WS_WQ+16*WQ_J+0x1000; WC_C=68*5120
WS_X=WS_WC+8*WC_C+0x1000;   X_T=272*256
WS_ST=WS_X+128*X_T+0x1000
WS_RS=WS_ST+2048*16
WS_CS=WS_RS+2048*4;  CS_P=896
WS_KV=WS_CS+256*CS_P; KV_P=3584
WS_PQ=WS_KV+256*KV_P
WS_END=WS_PQ+256*4*3072
sX,sWQ,sWO,sW1,sB1,sW2,sOUT,sWS,sDBG=[f's[{4+4*i}:{7+4*i}]' for i in range(9)]
sW='s40'; sTI='s41'; sJ='s42'; sTT='s43'; sC='s44'
SLOT=28672; NSLOT=5
L_MISC=SLOT*NSLOT
L_PB=4*SLOT
LDS_BYTES=163840
LOG2E=1.4426950408889634
def f32(x):
    import struct
    return '0x%08x'%struct.unpack('<I',struct.pack('<f',x))[0]
def setup(p, end_label, need=('x','wq','wo','w1','b1','w2','out','ws','dbg')):
    tab={'x':(4,0,2048*1280),'wq':(8,8,640*3840),'wo':(12,16,640*1280),'w1':(16,32,640*3072),'b1':(20,40,3072),
         'w2':(24,48,1536*1280),'out':(28,56,2048*1280),'dbg':(36,64,256),'ws':(32,72,WS_END)}
    p(f's_cmp_ge_u32 s2, 256\ns_cbranch_scc1 {end_label}')
    for n in need:
        r,o,sz=tab[n]; p(f's_load_dwordx2 s[{r}:{r+1}], s[0:1], {o}')
    for n in need:
        r,o,sz=tab[n]; p(f's_mov_b32 s{r+2}, {sz}\ns_mov_b32 s{r+3}, 0x20000')
    p(f'''v_lshrrev_b32 v1, 6, v0
    v_and_b32 v0, 63, v0
    v_readfirstlane_b32 {sW}, v1
    s_and_b32 s45, s2, 7
    s_lshr_b32 s46, s2, 3''')
    p(f'''s_and_b32 s47, s45, 1
    s_lshl_b32 s47, s47, 3
    s_and_b32 s48, s46, 7
    s_add_u32 {sTI}, s47, s48
    s_lshr_b32 s47, s45, 1
    s_lshl_b32 s47, s47, 2
    s_lshr_b32 s48, s46, 3
    s_add_u32 {sJ}, s47, s48''')
    p(f'''s_lshr_b32 s47, s45, 1
    s_lshl_b32 s47, s47, 3
    s_and_b32 s48, s46, 7
    s_add_u32 {sTT}, s47, s48
    s_and_b32 s47, s45, 1
    s_lshl_b32 s47, s47, 2
    s_lshr_b32 s48, s46, 3
    s_add_u32 {sC}, s47, s48''')
def kernel_text(name, lines):
    return f'''.globl {name}
.p2align 8
.type {name},@function
{name}:
'''+'\n'.join(lines)+'\n'
def descriptor(name, vgpr=512, accum=256, sgpr=102):
    return f'''.amdhsa_kernel {name}
  .amdhsa_next_free_vgpr {vgpr}
  .amdhsa_next_free_sgpr {sgpr}
  .amdhsa_accum_offset {accum}
  .amdhsa_group_segment_fixed_size 0
  .amdhsa_kernarg_size 80
  .amdhsa_user_sgpr_count 2
  .amdhsa_user_sgpr_kernarg_segment_ptr 1
  .amdhsa_system_sgpr_workgroup_id_x 1
.end_amdhsa_kernel
'''
def vr(b,n=4): return f'v[{b}:{b+n-1}]'
def ar(b,n=4): return f'a[{b}:{b+n-1}]'
M32='v_mfma_f32_32x32x16_bf16'; M16='v_mfma_f32_16x16x32_bf16'
```

```python
from common import *
from sched import *
XR=lambda g,s:1+4*g+s
W1R=lambda g:13+g
ACW=16; ACK=64; ACV=80; ACR=96; ACQ=112
SX=128; RSTD=132; RL=133; M2R=134; RSC=136; RLC=152; SWB=168; TMP=196
LIN=lambda g:232+g
XD=(235,236); WD=(237,238,239); ACTO=240; KVO=241; EXW=245; EXA=246; EXB=247; EXT=248
POOL=160; NP=24
QP=224+0
QP=220
L_EX=2*SLOT
sXB='s60'; sLX='s61'; sW1B='s62'; sLW='s63'; sKVB='s64'; sL6='s65'; sQB='s66'; sL5='s67'; sACT='s68'; sC1='s69'; sEPS='s70'; sT0='s71'; sKVP='s72'; sMV='s[74:75]'
def grp(slot): return slot//2
def p1_addr(p):
    a,b,c,d,e=TMP,TMP+1,TMP+2,TMP+3,TMP+4
    p(f'''v_and_b32 v{a}, 31, v0
    v_lshrrev_b32 v{b}, 5, v0
    v_bfe_u32 v{c}, v0, 1, 3
    v_xor_b32 v{c}, v{c}, v{b}
    v_bfe_u32 v{d}, v0, 4, 1
    v_lshlrev_b32 v{d}, 3, v{d}
    v_bfe_u32 v{c}, v0, 1, 3
    v_xor_b32 v{c}, v{c}, v{b}
    v_lshlrev_b32 v{c}, 4, v{c}
    v_lshl_add_u32 v{c}, v{a}, 7, v{c}
    s_lshl_b32 s45, {sW}, 12
    v_add_u32 v{c}, s45, v{c}''')
    for s in range(4):
        p(f'v_xor_b32 v{XR(0,s)}, {32*s}, v{c}')
        p(f'v_add_u32 v{XR(1,s)}, {2*SLOT}, v{XR(0,s)}\nv_add_u32 v{XR(2,s)}, {4*SLOT}, v{XR(0,s)}')
    p(f'''v_bfe_u32 v{c}, v0, 2, 2
    v_lshl_add_u32 v{c}, v{b}, 3, v{c}
    v_mul_u32_u24 v{c}, 192, v{c}
    v_bfe_u32 v{d}, v0, 4, 1
    v_lshl_add_u32 v{c}, v{d}, 5, v{c}
    v_and_b32 v{d}, 3, v0
    v_lshl_add_u32 v{W1R(0)}, v{d}, 3, v{c}
    v_add_u32 v{W1R(1)}, {2*SLOT}, v{W1R(0)}
    v_add_u32 v{W1R(2)}, {4*SLOT}, v{W1R(0)}
    v_lshlrev_b32 v{LIN(0)}, 4, v0
    v_add_u32 v{LIN(1)}, {2*SLOT}, v{LIN(0)}
    v_add_u32 v{LIN(2)}, {4*SLOT}, v{LIN(0)}''')
    p(f'''v_lshrrev_b32 v{c}, 3, v0
    v_mul_u32_u24 v{c}, 0x500, v{c}
    v_and_b32 v{d}, 7, v0
    v_lshrrev_b32 v{e}, 4, v0
    v_xor_b32 v{d}, v{d}, v{e}
    v_lshl_add_u32 v{XD[0]}, v{d}, 4, v{c}
    v_xor_b32 v{d}, 4, v{d}
    v_lshl_add_u32 v{XD[1]}, v{d}, 4, v{c}''')
    for n in range(3):
        p(f'''v_add_u32 v{c}, {64*n}, v0
        v_mul_u32_u24 v{d}, 0xaab, v{c}
        v_lshrrev_b32 v{d}, 15, v{d}
        v_mul_u32_u24 v{e}, 12, v{d}
        v_sub_u32 v{c}, v{c}, v{e}
        v_mul_u32_u24 v{d}, 0xc00, v{d}
        v_lshl_add_u32 v{WD[n]}, v{c}, 4, v{d}''')
    p(f'''s_lshl_b32 s45, {sTI}, 2
    s_add_u32 s45, s45, {sW}
    s_lshl_b32 {sT0}, s45, 5
    s_mul_i32 {sXB}, {sT0}, 1280
    s_lshl_b32 {sLX}, {sW}, 12
    s_mul_i32 s46, {sW}, {16*3072}
    s_mul_i32 s47, {sJ}, 192
    s_add_u32 {sW1B}, s46, s47
    s_mul_i32 {sLW}, {sW}, 3072
    s_add_u32 {sLW}, {sLW}, 16384
    s_mul_i32 s46, {sJ}, {WQ_J}
    s_add_u32 s46, s46, {WS_WQ}
    s_mul_i32 {sL6}, {sW}, 6144
    s_add_u32 {sKVB}, s46, {sL6}
    s_mul_i32 {sL5}, {sW}, 5120
    s_add_u32 {sQB}, s46, {sL5}
    s_add_u32 {sQB}, {sQB}, {WQ_QOFF}
    s_lshl_b32 s45, s45, 1
    s_mul_i32 s45, s45, {X_T}
    s_mul_i32 s46, {sJ}, 3072
    s_add_u32 s45, s45, s46
    s_add_u32 {sACT}, s45, {WS_X}
    s_mov_b32 {sC1}, {f32(1.000001)}
    s_mov_b32 {sEPS}, {f32(1e-6)}
    s_mov_b32 s74, 0xff00ff00
    s_mov_b32 s75, 0xff00ff00
    s_lshl_b32 s45, {sJ}, 4
    s_add_u32 s45, s45, {sTI}
    s_mul_i32 s45, s45, {KV_P}
    s_add_u32 {sKVP}, s45, {WS_KV}''')
    p(f'''v_bfe_u32 v{c}, v0, 4, 1
    v_mul_u32_u24 v{c}, {X_T}, v{c}
    v_lshl_add_u32 v{c}, v{b}, 8, v{c}
    v_and_b32 v{d}, 15, v0
    v_lshl_add_u32 v{ACTO}, v{d}, 4, v{c}
    s_mul_i32 s45, {sW}, 6144
    s_add_u32 s45, s45, {L_EX}
    v_add_u32 v{EXW}, s45, v{LIN(0)}
    s_lshr_b32 s46, {sW}, 1
    s_lshl_b32 s46, s46, 12
    s_add_u32 s46, s46, {L_EX}
    v_add_u32 v{EXA}, s46, v{LIN(0)}
    s_and_b32 s46, {sW}, 1
    s_lshl_b32 s46, s46, 11
    s_add_u32 s46, s46, {L_EX+2048}
    v_add_u32 v{EXB}, s46, v{LIN(0)}
    v_bfe_u32 v{c}, v0, 2, 2
    v_and_b32 v{d}, 1, v0
    v_lshl_add_u32 v{c}, v{d}, 5, v{c}
    v_lshlrev_b32 v{c}, 4, v{c}
    v_bfe_u32 v{d}, v0, 1, 1
    v_lshl_add_u32 v{c}, v{d}, 3, v{c}
    v_bfe_u32 v{d}, v0, 4, 1
    v_lshl_add_u32 v{c}, v{d}, 10, v{c}
    s_add_u32 s45, s45, {4096+256}
    v_add_u32 v{EXT}, s45, v{c}''')
    eg,vb,zz=TMP+5,TMP+6,TMP+7
    p(f'''s_and_b32 s45, {sW}, 1
    s_mul_i32 s46, s45, 24
    v_add_u32 v{eg}, s46, v{a}
    s_cmp_eq_u32 s45, 1
    s_cselect_b32 s46, 0x0100ff00, -1
    s_mov_b32 s47, s46
    s_cselect_b32 s48, 0x01000000, 0
    s_mov_b32 s49, s48
    s_lshr_b32 s45, {sW}, 1
    s_lshl_b32 s50, s45, 5
    v_cmp_le_u32 s[52:53], 20, v{eg}
    v_mov_b32 v{zz}, 0x40000000''')
    for q in range(4):
        p(f'''v_lshlrev_b32 v{c}, 2, v{b}
        s_add_u32 s51, s50, {8*q}
        v_add_u32 v{c}, s51, v{c}
        v_cmp_le_u32 vcc, 20, v{c}
        v_mov_b32 v{d}, 0
        v_mov_b32 v{e}, 20
        v_cndmask_b32 v{d}, v{d}, v{e}, vcc
        v_sub_u32 v{c}, v{c}, v{d}
        v_sub_u32 v{e}, v{eg}, v{d}
        v_mov_b32 v{vb}, 20
        v_cndmask_b32 v{e}, v{e}, v{vb}, s[48:49]
        v_lshrrev_b32 v{d}, 2, v{d}
        v_mul_u32_u24 v{d}, 336, v{d}
        v_mul_u32_u24 v{e}, 80, v{e}
        v_lshl_add_u32 v{c}, v{c}, 2, v{d}
        v_add_u32 v{c}, v{c}, v{e}
        s_xnor_b64 s[56:57], vcc, s[52:53]
        s_or_b64 s[56:57], s[56:57], s[48:49]
        s_and_b64 s[56:57], s[56:57], s[46:47]''')
        if q>0: p(f's_cmp_eq_u32 s45, 0\ns_cselect_b64 s[56:57], s[56:57], 0')
        p(f'v_cndmask_b32 v{KVO+q}, v{zz}, v{c}, s[56:57]')
def dma_stage(s):
    SB=(s%NSLOT)*SLOT; out=[]
    if s<10:
        for i in range(4):
            out.append(f's_add_u32 m0, {sLX}, {SB+1024*i}\ns_add_u32 s45, {sXB}, {8*i*1280+128*s}\nbuffer_load_dwordx4 v{XD[i&1]}, {sX}, s45 offen lds ;#st{s}')
        for n in range(3):
            out.append(f's_add_u32 m0, {sLW}, {SB+1024*n}\ns_add_u32 s45, {sW1B}, {64*s*3072}\nbuffer_load_dwordx4 v{WD[n]}, {sW1}, s45 offen lds ;#st{s}')
    else:
        kv=s<15; cnt=6 if kv else 5
        for n in range(cnt):
            pre=''
            if n%4==0:
                g=(s-10)*24576 if kv else (s-15)*20480
                pre=f's_add_u32 m0, {sL6 if kv else sL5}, {SB+1024*n}\ns_add_u32 s46, {sKVB if kv else sQB}, {g+1024*n}\n'
            out.append(pre+f'buffer_load_dwordx4 v{LIN(0)}, {sWS}, s46 offen offset:{1024*(n%4)} sc1 lds ;#st{s}')
    return out
def p1_stats_issue(p):
    a,b=TMP,TMP+1
    p(f'''v_and_b32 v{a}, 31, v0
    v_lshlrev_b32 v{b}, 4, v{a}
    s_lshl_b32 s45, {sT0}, 4
    s_add_u32 s45, s45, {WS_ST}
    buffer_load_dwordx4 {vr(SX)}, v{b}, {sWS}, s45 offen sc1
    v_lshrrev_b32 v{b}, 5, v0
    v_lshlrev_b32 v{b}, 4, v{b}
    s_lshl_b32 s45, {sT0}, 2
    s_add_u32 s45, s45, {WS_RS}''')
    for q in range(4): p(f'buffer_load_dwordx4 {vr(RSC+4*q)}, v{b}, {sWS}, s45 offen offset:{32*q} sc1')
    p(f'''v_min_u32 v{b}, 55, v0
    v_lshlrev_b32 v{TMP+2}, 4, v{b}
    s_lshl_b32 s45, {sJ}, 2
    s_add_u32 s45, s45, {sW}
    s_mul_i32 s45, s45, {4*CS_P}
    s_add_u32 s45, s45, {WS_CS}''')
    for i in range(4): p(f'buffer_load_dwordx4 {vr(TMP+4+4*i)}, v{TMP+2}, {sWS}, s45 offen offset:{CS_P*i} sc1')
    p(f'''v_lshlrev_b32 v{a}, 1, v{a}
    s_mul_i32 s45, {sJ}, 192''')
    for t in range(3): p(f'buffer_load_ushort v{TMP+20+t}, v{a}, {sB1}, s45 offen offset:{64*t}')
def p1_stats_finish(p):
    a=TMP; S=TMP+4
    for i in range(1,4):
        for k in range(4): p(f'v_add_f32 v{S+k}, v{S+k}, v{S+4*i+k}')
    p(f'''s_mul_i32 s45, {sW}, {CS_P}
    s_add_u32 s45, s45, {L_MISC}
    v_add_u32 v{TMP+2}, s45, v{TMP+2}
    ds_write_b128 v{TMP+2}, {vr(S)}
    v_and_b32 v{a}, 31, v0
    v_lshlrev_b32 v{a}, 2, v{a}
    v_add_u32 v{a}, {L_MISC}, v{a}
    v_mov_b32 v{RSTD}, v{SX+3}
    v_mov_b32 v{SX+3}, 0
    v_mul_f32 v{RL}, {f32(LOG2E)}, v{RSTD}
    v_mul_f32 v{M2R}, -2.0, v{RSTD}''')
    for r in range(16): p(f'v_mul_f32 v{RLC+r}, {f32(LOG2E)}, v{RSC+r}')
    p('@wait lg\ns_barrier')
    for t in range(7):
        for w in range(4): p(f'ds_read_b32 v{SWB+4*t+w}, v{a} offset:{CS_P*w+128*t}')
    hm=TMP+1; z=TMP+2; one=TMP+3
    p(f'''v_cmp_gt_u32 vcc, 32, v0
    v_mov_b32 v{z}, 0
    v_mov_b32 v{one}, 1.0
    v_cndmask_b32 v{hm}, v{z}, v{one}, vcc
    s_mov_b32 s46, 0xff000000
    s_mov_b32 s47, 0
    v_cndmask_b32 v{one}, v{z}, v{one}, s[46:47]''')
    for t in range(3): p(f'v_lshlrev_b32 v{TMP+20+t}, 16, v{TMP+20+t}\nv_mul_f32 v{TMP+20+t}, v{TMP+20+t}, v{hm}')
    for t in range(7):
        B=SWB+4*t
        bias=TMP+20+t if t<3 else (one if t==5 else z)
        p(f'''v_add_f32 v{B}, v{B}, v{B+1}
        v_add_f32 v{B+2}, v{B+2}, v{B+3}
        v_add_f32 v{B+2}, v{B}, v{B+2}
        v_mul_f32 v{B+2}, v{B+2}, v{hm}
        v_cvt_pk_bf16_f32 v{B}, v{B+2}, v{B+2}
        v_lshlrev_b32 v{B+3}, 16, v{B}
        v_sub_f32 v{B+2}, v{B+2}, v{B+3}
        v_cvt_pk_bf16_f32 v{B+1}, v{B+2}, v{bias}
        v_cvt_pk_bf16_f32 v{B+2}, v{bias}, v{z}
        v_mov_b32 v{B+3}, 0''')
def mish_stream(st, gate):
    k=0
    for t in range(3):
        for rq in range(2):
            PK=TMP+16+4*(k&1); k+=1
            for g in range(2):
                A=ACW+16*t+8*rq+4*g; E=TMP+8*g; U=E+4
                for op in ('v_mul_f32 v{e}, v{a}, v{RL}','v_exp_f32 v{e}, v{e}','v_add_f32 v{u}, 2.0, v{e}','v_fma_f32 v{e}, v{e}, v{u}, 2.0',
                           'v_rcp_f32 v{e}, v{e}','v_fma_f32 v{e}, v{e}, v{M2R}, v{RSTD}','v_mul_f32 v{e}, v{a}, v{e}'):
                    for i in range(4): st.add(op.format(e=E+i,u=U+i,a=A+i,RL=RL,M2R=M2R,RSTD=RSTD),gate)
                st.add(f'v_cvt_pk_bf16_f32 v{PK+2*g}, v{E}, v{E+1}\nv_cvt_pk_bf16_f32 v{PK+2*g+1}, v{E+2}, v{E+3}',gate)
            st.add(f'buffer_store_dwordx4 {vr(PK)}, v{ACTO}, {sWS}, {sACT} offen offset:{(4*t+2*rq)*256} sc1 ;#act',gate)
def phi_ops(st, gate, A, rs, rl, E, U, dst):
    for i in range(4): st.add(f'v_mul_f32 v{E+i}, v{A+i}, v{rl(i)}',gate)
    for i in range(4): st.add(f'v_exp_f32 v{E+i}, v{E+i} clamp',gate)
    for i in range(4): st.add(f'v_fma_f32 v{U+i}, v{A+i}, v{rs(i)}, {sC1}',gate)
    for i in range(4): st.add(f'v_add_f32 v{E+i}, {sEPS}, v{E+i}',gate)
    for i in range(4): st.add(f'v_max_f32 v{E+i}, v{E+i}, v{U+i}',gate)
    st.add(f'v_cvt_pk_bf16_f32 v{dst}, v{E}, v{E+1}\nv_cvt_pk_bf16_f32 v{dst+1}, v{E+2}, v{E+3}',gate)
def kv_stream(st, gate):
    k=0
    for tile,AC in ((1,ACV),(0,ACK),(2,ACR)):
        for ks in range(2):
            PK=TMP+16+4*(k&1); k+=1
            for g in range(2):
                r0=8*ks+4*g; A=AC+r0; E=TMP+8*g; U=E+4
                if tile==0: phi_ops(st,gate,A,lambda i:RSC+r0+i,lambda i:RLC+r0+i,E,U,PK+2*g)
                elif tile==1:
                    for i in range(4): st.add(f'v_mul_f32 v{E+i}, v{A+i}, v{RSC+r0+i}',gate)
                    st.add(f'v_cvt_pk_bf16_f32 v{PK+2*g}, v{E}, v{E+1}\nv_cvt_pk_bf16_f32 v{PK+2*g+1}, v{E+2}, v{E+3}',gate)
                else:
                    for i in range(4): st.add(f'v_mul_f32 v{E+i}, v{A+i}, v{RLC+r0+i}',gate)
                    for i in range(4): st.add(f'v_exp_f32 v{E+i}, v{E+i} clamp',gate)
                    for i in range(4): st.add(f'v_mul_f32 v{A+i}, v{A+i}, v{RSC+r0+i}',gate)
                    for i in range(4): st.add(f'v_add_f32 v{E+i}, {sEPS}, v{E+i}',gate)
                    for i in range(4): st.add(f'v_add_f32 v{U+i}, {sC1}, v{A+i}',gate)
                    for i in range(4): st.add(f'v_max_f32 v{E+i}, v{E+i}, v{U+i}',gate)
                    for i in range(4): st.add(f'v_cndmask_b32 v{E+i}, v{E+i}, v{A+i}, {sMV}',gate)
                    st.add(f'v_cvt_pk_bf16_f32 v{PK+2*g}, v{E}, v{E+1}\nv_cvt_pk_bf16_f32 v{PK+2*g+1}, v{E+2}, v{E+3}',gate)
            st.add(f'ds_write_b128 v{EXW}, {vr(PK)} offset:{2048*tile+1024*ks} ;#ex',gate)
def p1_main(p, first_open=()):
    mf=[]; reads=[]; fr=0
    def slot():
        nonlocal fr
        b=POOL+4*(fr%NP); fr+=1; return b
    for ks in range(40):
        s=ks//4; q=ks%4; sl=s%NSLOT; g=grp(sl); o=(sl%2)*SLOT
        reads.append((f'ds_read_b128 {ar(4*ks)}, v{XR(g,q)} offset:{o} ;#rd{s}',s,len(mf)))
        for t in range(3):
            b=slot(); off=o+16384+q*3072+64*t
            reads.append((f'ds_read_b64_tr_b16 {ar(b,2)}, v{W1R(g)} offset:{off} ;#rd{s}\nds_read_b64_tr_b16 {ar(b+2,2)}, v{W1R(g)} offset:{off+768} ;#rd{s}',s,len(mf)))
            D=vr(ACW+16*t,16)
            mf.append(f'{M32} {D}, {ar(b)}, {ar(4*ks)}, {"0" if ks==0 else D}')
    for t in range(3):
        D=vr(ACW+16*t,16); mf.append(f'{M32} {D}, {vr(SWB+4*t)}, {vr(SX)}, {D}')
    g_mish=len(mf)+1
    for ks in range(40):
        s=10+ks//8; sl=s%NSLOT; g=grp(sl); o=(sl%2)*SLOT
        for t,AC in enumerate((ACK,ACV,ACR)):
            b=slot()
            reads.append((f'ds_read_b128 {ar(b)}, v{LIN(g)} offset:{o+(3*(ks%8)+t)*1024} ;#rd{s}',s,len(mf)))
            D=vr(AC,16); mf.append(f'{M32} {D}, {ar(4*ks)}, {ar(b)}, {"0" if ks==0 else D}')
    for t,AC in ((1,ACV),(0,ACK),(2,ACR)):
        D=vr(AC,16); mf.append(f'{M32} {D}, {vr(SX)}, {vr(SWB+12+4*t)}, {D}')
    g_kv=len(mf)+1
    for ks in range(40):
        s=15+ks//20; sl=s%NSLOT; g=grp(sl); o=(sl%2)*SLOT
        b=slot()
        reads.append((f'ds_read_b128 {ar(b)}, v{LIN(g)} offset:{o+(ks%20)*1024} ;#rd{s}',s,len(mf)))
        D=vr(ACQ,16); mf.append(f'{M32} {D}, {ar(b)}, {ar(4*ks)}, {"0" if ks==0 else D}')
    D=vr(ACQ,16); mf.append(f'{M32} {D}, {vr(SWB+24)}, {vr(SX)}, {D}')
    opens={}
    for s in range(0,17):
        def f(s=s):
            head=(f'@lgwait rd{s-1}\n' if s>0 else '')+f'@vmwait st{s}\ns_barrier'
            return head,(dma_stage(s+4) if s+4<17 else [])
        opens[s]=f
    st1=Stream(); mish_stream(st1,g_mish)
    kv_stream(st1,g_kv)
    run_pass(p,mf,reads,opens,[st1],depth=9,delay=3)
def p1_tail(p):
    p('@wait lg\ns_barrier')
    for u in range(4):
        for ks in range(2):
            k=2*u+ks
            p(f'ds_read_b128 {ar(8*k)}, v{EXA} offset:{6144*u+1024*ks}\nds_read_b128 {ar(8*k+4)}, v{EXB} offset:{6144*u+1024*ks}')
    p(f'ds_read_b64_tr_b16 {vr(QP+8,2)}, v{EXT}\nds_read_b64_tr_b16 {vr(QP+10,2)}, v{EXT} offset:64')
    D=vr(ACW,16)
    st=Stream()
    for g in range(4): phi_ops(st,0,ACQ+4*g,lambda i:RSTD,lambda i:RL,TMP+8*(g&1),TMP+8*(g&1)+4,QP+2*g)
    mf=[f'{M32} {D}, {ar(8*k)}, {ar(8*k+4)}, {"0" if k==0 else D}' for k in range(8)]
    run_pass(p,mf,[],{},[st],depth=4,drain=False)
    for q in range(4): p(f'buffer_store_dwordx4 {vr(ACW+4*q)}, v{KVO+q}, {sWS}, {sKVP} offen sc1 ;#kvp')
    while st.q: p.extend(st.q.pop(0)[1])
```

```python
from common import *
def prologue_issue(p, T=200):
    a,b,c_,d=T,T+1,T+2,T+3
    vQ,vW1,vC,vS=T+4,T+5,T+6,T+7
    p(f'''v_lshrrev_b32 v{a}, 4, v0
    v_and_b32 v{b}, 15, v0
    v_min_u32 v{c_}, 14, v{b}
    v_mul_u32_u24 v{d}, 52, v{c_}
    v_lshrrev_b32 v{d}, 8, v{d}
    v_mul_u32_u24 v{vS}, 5, v{d}
    v_sub_u32 v{c_}, v{c_}, v{vS}
    v_add_u32 v{vS}, 1, v{d}
    v_mov_b32 v{T+8}, 0
    v_cmp_eq_u32 vcc, 2, v{d}
    v_mul_u32_u24 v{vS}, 0x500, v{vS}
    v_cndmask_b32 v{vS}, v{vS}, v{T+8}, vcc''')
    p(f'''v_lshl_add_u32 v{vS}, v{c_}, 4, v{vS}
    v_mul_u32_u24 v{vQ}, 0xf00, v{a}
    v_add_u32 v{vQ}, v{vQ}, v{vS}
    v_min_u32 v{c_}, 11, v{b}
    v_mul_u32_u24 v{vW1}, 0xc00, v{a}
    v_lshl_add_u32 v{vW1}, v{c_}, 4, v{vW1}
    v_min_u32 v{c_}, 9, v{b}
    v_mul_u32_u24 v{vC}, 0x500, v{a}
    v_lshl_add_u32 v{vC}, v{c_}, 4, v{vC}
    v_lshrrev_b32 v{a}, 5, v0
    v_and_b32 v{b}, 31, v0
    v_mul_u32_u24 v{vS}, 0x500, v{a}
    v_lshl_add_u32 v{T+9}, v{b}, 3, v{vS}
    v_lshl_add_u32 v{vS}, v{b}, 4, v{vS}''')
    p(f'''s_mul_i32 s50, {sTI}, 40
    s_mul_i32 s51, {sJ}, 80
    s_mul_i32 s52, {sJ}, 192
    s_mul_i32 s53, {sC}, 160''')
    for n in range(3):
        p(f'''s_add_u32 s45, {sW}, {4*n}
        s_min_u32 s45, s45, 9
        s_lshl_b32 s46, s45, 2
        s_add_u32 s46, s46, s50
        s_mul_i32 s47, s46, 3840
        s_add_u32 s47, s47, s51
        s_lshl_b32 s45, s45, 10
        s_add_u32 m0, s45, {L_PB}
        s_mul_i32 s48, s46, 3072
        buffer_load_dwordx4 v{vQ}, {sWQ}, s47 offen lds
        s_add_u32 s48, s48, s52
        s_add_u32 m0, s45, {L_PB+10240}
        s_nop 0
        buffer_load_dwordx4 v{vW1}, {sW1}, s48 offen lds''')
    p(f'''s_lshl_b32 s45, {sTI}, 4
    s_add_u32 s45, s45, {sJ}
    s_lshl_b32 s45, s45, 2
    s_add_u32 s45, s45, {sW}
    s_lshl_b32 s54, s45, 1
    s_mul_i32 s45, s54, 1280
    buffer_load_dwordx4 {vr(T+16)}, v{vS}, {sX}, s45 offen
    buffer_load_dwordx4 {vr(T+20)}, v{vS}, {sX}, s45 offen offset:512
    buffer_load_dwordx2 {vr(T+24,2)}, v{T+9}, {sX}, s45 offen offset:1024''')
    p(f's_mul_i32 s50, {sTT}, 48')
    for n in range(3):
        p(f'''s_add_u32 s45, {sW}, {4*n}
        s_lshl_b32 s46, s45, 2
        s_add_u32 s46, s46, s50
        s_mul_i32 s47, s46, 1280
        s_add_u32 s47, s47, s53
        s_lshl_b32 s45, s45, 10
        s_add_u32 m0, s45, {L_PB+20480}
        s_nop 0
        buffer_load_dwordx4 v{vC}, {sW2}, s47 offen lds''')
    p(f'''s_lshr_b32 s50, {sTT}, 1
    s_mul_i32 s50, s50, 40''')
    for n in range(3,6):
        if n==3: p(f's_lshl_b32 s46, {sW}, 2')
        elif n==4: p(f's_lshl_b32 s46, {sW}, 2\ns_add_u32 s46, s46, 20')
        else: p(f's_lshr_b32 s46, {sW}, 1\ns_mul_i32 s46, s46, 20\ns_add_u32 s46, s46, 16')
        p(f'''s_add_u32 s46, s46, s50
        s_mul_i32 s47, s46, 1280
        s_add_u32 s47, s47, s53
        s_add_u32 s45, {sW}, {4*n}
        s_lshl_b32 s45, s45, 10
        s_add_u32 m0, s45, {L_PB+20480}
        s_nop 0
        buffer_load_dwordx4 v{vC}, {sWO}, s47 offen lds''')
def prologue_work(p, T=200, U=16):
    a,b,c_,d,e,f_=T,T+1,T+2,T+3,T+4,T+5
    A1,A2=U+80,U+84
    D1,D2=U+48,U+64
    X=T+16; Y=U
    for i in range(10):
        p(f'v_lshlrev_b32 v{Y+2*i}, 16, v{X+i}\nv_and_b32 v{Y+2*i+1}, 0xffff0000, v{X+i}')
    def red32(r,t):
        for k in (8,4,2,1): p(f'v_add_f32_dpp v{r}, v{r}, v{r} row_ror:{k} row_mask:0xf bank_mask:0xf')
        p(f'v_mov_b32 v{t}, v{r}\nv_permlane16_swap_b32 v{r}, v{t}\nv_add_f32 v{r}, v{r}, v{t}')
    p(f'v_add_f32 v{a}, v{Y}, v{Y+1}\nv_add_f32 v{b}, v{Y+2}, v{Y+3}')
    for i in range(4,20,2): p(f'v_add_f32 v{a}, v{a}, v{Y+i}\nv_add_f32 v{b}, v{b}, v{Y+i+1}')
    p(f'v_add_f32 v{a}, v{a}, v{b}')
    red32(a,b)
    p(f'v_mul_f32 v{a}, {f32(-1.0/640)}, v{a}')
    for i in range(20): p(f'v_add_f32 v{Y+i}, v{Y+i}, v{a}')
    p(f'v_mul_f32 v{b}, v{Y}, v{Y}\nv_mul_f32 v{c_}, v{Y+1}, v{Y+1}')
    for i in range(2,20,2): p(f'v_fmac_f32 v{b}, v{Y+i}, v{Y+i}\nv_fmac_f32 v{c_}, v{Y+i+1}, v{Y+i+1}')
    p(f'v_add_f32 v{b}, v{b}, v{c_}')
    red32(b,c_)
    R=U+20
    p(f'''v_mov_b32 v{c_}, {f32(1e-5)}
    v_fmac_f32 v{c_}, {f32(1.0/640)}, v{b}
    v_rsq_f32 v{R+3}, v{c_}
    v_lshrrev_b32 v{e}, 5, v0
    v_add_u32 v{e}, s54, v{e}
    v_mul_f32 v{b}, v{c_}, v{R+3}
    v_cvt_pk_bf16_f32 v{R+1}, v{a}, v{b}
    v_lshlrev_b32 v{c_}, 16, v{R+1}
    v_and_b32 v{d}, 0xffff0000, v{R+1}
    v_sub_f32 v{c_}, v{a}, v{c_}
    v_sub_f32 v{d}, v{b}, v{d}
    v_cvt_pk_bf16_f32 v{R}, v{a}, v{c_}
    v_mov_b32 v{f_}, 0
    v_cvt_pk_bf16_f32 v{R+2}, v{d}, v{f_}
    v_lshlrev_b32 v{f_}, 4, v{e}
    v_lshlrev_b32 v{e}, 2, v{e}
    s_mov_b32 s46, 1
    s_mov_b32 s47, 1
    s_mov_b32 s48, {WS_ST}
    s_mov_b32 s49, {WS_RS}
    s_mov_b64 exec, s[46:47]
    buffer_store_dwordx4 {vr(R)}, v{f_}, {sWS}, s48 offen sc1
    buffer_store_dword v{R+3}, v{e}, {sWS}, s49 offen sc1
    s_mov_b64 exec, -1''')
    aQ,aQ2,aW,aW2=T+6,T+7,T+8,T+9
    p(f'''v_bfe_u32 v{a}, v0, 4, 1
    v_bfe_u32 v{b}, v0, 1, 1
    v_lshl_add_u32 v{a}, v{a}, 1, v{b}
    v_bfe_u32 v{b}, v0, 2, 2
    v_and_b32 v{c_}, 1, v0
    v_lshlrev_b32 v{c_}, 3, v{c_}
    v_lshl_add_u32 v{b}, v{b}, 8, v{c_}
    v_lshrrev_b32 v{d}, 5, v0
    s_cmp_eq_u32 {sW}, 2
    s_cselect_b32 s45, 5, 1
    s_mul_i32 s46, {sW}, 5
    s_cmp_eq_u32 {sW}, 3
    s_cselect_b32 s46, 10, s46
    s_cmp_eq_u32 {sW}, 2
    s_cselect_b32 s46, 4, s46
    s_min_u32 s47, {sW}, 2
    s_lshl_b32 s48, s47, 2
    v_mov_b32 v{e}, s46
    v_mad_u32_u24 v{e}, v{a}, s45, v{e}
    v_min_u32 v{e}, 15, v{e}
    v_lshl_add_u32 v{aQ2}, v{e}, 4, v{b}
    v_add_u32 v{aQ2}, {L_PB}, v{aQ2}
    v_lshl_add_u32 v{aQ}, v{d}, 11, v{aQ2}
    v_add_u32 v{e}, s48, v{a}
    v_lshl_add_u32 v{aW2}, v{e}, 4, v{b}
    v_add_u32 v{aW2}, {L_PB+10240}, v{aW2}
    v_lshl_add_u32 v{aW}, v{d}, 11, v{aW2}
    v_mov_b32 v{e}, 0x3f803f80
    v_cmp_gt_u32 vcc, 32, v0
    v_mov_b32 v{f_}, 0''')
    for i in range(4): p(f'v_mov_b32 v{A1+i}, v{e}\nv_cndmask_b32 v{A2+i}, v{f_}, v{e}, vcc')
    p(f'''s_cmp_eq_u32 {sW}, 2
    s_cselect_b32 s56, 0xff000000, 0
    s_mov_b32 s57, s56''')
    dq=[T+10,T+11,T+12]
    p(f'''s_mul_i32 s45, {sTI}, 5
    s_lshl_b32 s48, {sW}, 10
    s_movk_i32 s46, 3072
    s_cmp_eq_u32 {sW}, 3
    s_cselect_b32 s46, 1024, s46
    s_cselect_b32 s48, {WQ_QOFF}, s48
    s_mul_i32 s49, {sJ}, {WQ_J}
    s_add_u32 s58, s48, s49
    s_add_u32 s58, s58, {WS_WQ}
    v_and_b32 v{c_}, 31, v0
    v_lshlrev_b32 v{c_}, 4, v{c_}''')
    for n in range(3):
        p(f'''v_add_u32 v{a}, s45, v{d}
        v_add_u32 v{a}, {2*n}, v{a}
        v_and_b32 v{b}, 1, v{a}
        v_lshrrev_b32 v{a}, 1, v{a}
        v_lshl_add_u32 v{b}, v{b}, 9, v{c_}
        v_mad_u32_u24 v{dq[n]}, v{a}, s46, v{b}''')
    ua=[T+13,T+14,T+15,U+88]; ud=[U+89,U+90,U+91,U+92]
    p(f'''v_lshrrev_b32 v{a}, 4, v0
    s_lshl_b32 s45, {sW}, 2
    v_add_u32 v{a}, s45, v{a}
    v_bfe_u32 v{e}, v0, 2, 2
    v_and_b32 v{f_}, 3, v0
    v_lshlrev_b32 v{f_}, 3, v{f_}
    v_lshl_add_u32 v{e}, v{e}, 8, v{f_}
    v_and_b32 v{f_}, 15, v0
    v_lshlrev_b32 v{f_}, 4, v{f_}
    s_mul_i32 s46, {sTT}, 6
    s_lshr_b32 s47, {sTT}, 1
    s_mul_i32 s47, s47, 5
    s_add_u32 s47, s47, 192
    s_movk_i32 s48, 5120
    s_mul_i32 s59, {sC}, {WC_C}
    s_add_u32 s59, s59, {WS_WC}''')
    for n in range(4):
        wo=n>=2
        p(f'''v_add_u32 v{b}, {16*(n&1)}, v{a}
        v_min_u32 v{b}, {24 if wo else 29}, v{b}
        v_mul_u32_u24 v{c_}, 52, v{b}
        v_lshrrev_b32 v{c_}, 8, v{c_}
        v_mul_u32_u24 v{d}, 5, v{c_}
        v_sub_u32 v{b}, v{b}, v{d}
        v_lshrrev_b32 v{d}, 1, v{c_}
        v_lshlrev_b32 v{ua[n]}, 12, v{d}
        v_and_b32 v{d}, 1, v{c_}
        v_lshl_add_u32 v{ua[n]}, v{d}, 10, v{ua[n]}
        v_lshl_add_u32 v{ua[n]}, v{b}, 5, v{ua[n]}
        v_add_u32 v{ua[n]}, v{e}, v{ua[n]}
        v_add_u32 v{ua[n]}, {L_PB+20480+(48*256 if wo else 0)}, v{ua[n]}
        v_add_u32 v{c_}, {'s47' if wo else 's46'}, v{c_}
        v_lshrrev_b32 v{d}, 2, v{c_}
        v_and_b32 v{c_}, 3, v{c_}
        v_lshl_add_u32 v{c_}, v{c_}, 8, v{f_}
        v_lshl_add_u32 v{c_}, v{b}, 10, v{c_}
        v_mad_u32_u24 v{ud[n]}, v{d}, s48, v{c_}''')
    p('@vmwait dma\ns_barrier')
    for n in range(3):
        F=U+8*n
        p(f'''ds_read_b64_tr_b16 {vr(F,2)}, v{aQ if n<2 else aQ2} offset:{4096*n}
        ds_read_b64_tr_b16 {vr(F+2,2)}, v{aQ if n<2 else aQ2} offset:{4096*n+1024}
        ds_read_b64_tr_b16 {vr(F+4,2)}, v{aW if n<2 else aW2} offset:{4096*n}
        ds_read_b64_tr_b16 {vr(F+6,2)}, v{aW if n<2 else aW2} offset:{4096*n+1024}''')
    for n in range(4):
        F=U+24+4*n
        p(f'''ds_read_b64_tr_b16 {vr(F,2)}, v{ua[n]}
        ds_read_b64_tr_b16 {vr(F+2,2)}, v{ua[n]} offset:2048''')
    p(f'v_mov_b32 v{a}, 0')
    for n in range(3):
        F=U+8*n
        for i in range(4): p(f'v_cndmask_b32 v{F+i}, v{F+i}, v{a}, s[56:57]')
        A=A1 if n<2 else A2
        p(f'{M32} {vr(D1,16)}, {vr(A)}, {vr(F)}, {"0" if n==0 else vr(D1,16)}')
        p(f'{M32} {vr(D2,16)}, {vr(A)}, {vr(F+4)}, {"0" if n==0 else vr(D2,16)}')
        if n==2: p('s_mov_b32 exec_hi, 0')
        p(f'buffer_store_dwordx4 {vr(F)}, v{dq[n]}, {sWS}, s58 offen sc1')
        if n==2: p('s_mov_b32 exec_hi, -1')
    for n in range(4):
        p(f'buffer_store_dwordx4 {vr(U+24+4*n)}, v{ud[n]}, {sWS}, s59 offen sc1')
    p(f'''s_lshl_b32 s45, {sJ}, 4
    s_add_u32 s45, s45, {sTI}
    s_mul_i32 s45, s45, {CS_P}
    s_add_u32 s45, s45, {WS_CS}
    s_lshl_b32 s46, {sW}, 7
    s_add_u32 s46, s46, s45
    s_add_u32 s46, s46, 384
    s_min_u32 s47, {sW}, 2
    s_lshl_b32 s47, s47, 7
    s_add_u32 s47, s47, s45
    v_lshlrev_b32 v{a}, 2, v0
    s_mov_b32 exec_hi, 0
    buffer_store_dword v{D1}, v{a}, {sWS}, s46 offen sc1
    buffer_store_dword v{D2}, v{a}, {sWS}, s47 offen sc1
    s_mov_b32 exec_hi, -1''')
```

```python
from common import *
from sched import *
import p1
from p1 import QP,TMP,ACTO,LIN,sT0,sACT,sEPS
L_A2=L_MISC+4096; A2P=144
def r_zero(p):
    p(f'''v_mov_b32 v{TMP}, 0
    v_mov_b32 v{TMP+1}, 0
    v_mov_b32 v{TMP+2}, 0
    v_mov_b32 v{TMP+3}, 0
    s_lshl_b32 s45, {sW}, 10
    s_add_u32 s45, s45, {L_A2}
    v_lshl_add_u32 v{TMP+4}, v0, 4, s45
    ds_write_b128 v{TMP+4}, {vr(TMP)}''')
def r_issue(p, B=16):
    a=TMP
    p(f'''s_lshl_b32 s45, {sW}, 6
    v_add_u32 v{a}, s45, v0
    v_min_u32 v{a}, 209, v{a}
    v_lshlrev_b32 v{a+1}, 4, v{a}
    s_mul_i32 s45, {sJ}, {16*KV_P}
    s_add_u32 s45, s45, {WS_KV}''')
    for i in range(16):
        p(f'buffer_load_dwordx4 {vr(B+4*i)}, v{a+1}, {sWS}, s45 offen sc1')
        if i<15: p(f's_add_u32 s45, s45, {KV_P}')
def r_work(p, B=16):
    a,b,c,d=TMP,TMP+1,TMP+2,TMP+3
    tab=[0,2,1,3,4,10,9,11,12,13]; val=sum(v<<(4*i) for i,v in enumerate(tab))
    p(f'''v_mul_u32_u24 v{b}, 0x3334, v{a}
    v_lshrrev_b32 v{b}, 16, v{b}
    v_mul_u32_u24 v{c}, 5, v{b}
    v_sub_u32 v{c}, v{a}, v{c}
    v_cmp_le_u32 vcc, 21, v{b}
    v_mov_b32 v{d}, 0
    v_mov_b32 v{a}, 1
    v_cndmask_b32 v{d}, v{d}, v{a}, vcc
    v_mul_u32_u24 v{a}, 21, v{d}
    v_sub_u32 v{b}, v{b}, v{a}
    v_mul_u32_u24 v{d}, 5, v{d}
    v_add_u32 v{c}, v{c}, v{d}
    v_lshlrev_b32 v{c}, 2, v{c}
    s_mov_b32 s46, {val&0xffffffff}
    s_mov_b32 s47, {val>>32}
    v_lshrrev_b64 v[{TMP+4}:{TMP+5}], v{c}, s[46:47]
    v_and_b32 v{c}, 15, v{TMP+4}
    v_mul_u32_u24 v{b}, {A2P}, v{b}
    v_lshl_add_u32 v{b}, v{c}, 3, v{b}
    v_add_u32 v{b}, {L_A2}, v{b}''')
    n=16
    while n>1:
        n//=2
        for i in range(n):
            for k in range(4): p(f'v_add_f32 v{B+4*i+k}, v{B+4*i+k}, v{B+4*(i+n)+k}')
    p(f'''v_cvt_pk_bf16_f32 v{B+4}, v{B}, v{B+1}
    v_cvt_pk_bf16_f32 v{B+5}, v{B+2}, v{B+3}
    ds_write_b64 v{b}, {vr(B+4,2)}
    v_and_b32 v{a}, 31, v0
    v_min_u32 v{a}, 20, v{a}
    v_mul_u32_u24 v{a}, {A2P}, v{a}
    v_lshrrev_b32 v{c}, 5, v0
    v_lshl_add_u32 v{a}, v{c}, 4, v{a}
    v_add_u32 v{a}, {L_A2}, v{a}
    @wait lg
    s_barrier''')
    F=B+8; DA=B+24; DB=B+40
    for f in range(4): p(f'ds_read_b128 {vr(F+4*f)}, v{a} offset:{32*f}')
    p(f'''{M32} {vr(DA,16)}, {vr(F)}, {vr(QP)}, 0
    {M32} {vr(DB,16)}, {vr(F+8)}, {vr(QP+4)}, 0
    {M32} {vr(DA,16)}, {vr(F+4)}, {vr(QP+4)}, {vr(DA,16)}
    {M32} {vr(DB,16)}, {vr(F+12)}, {vr(QP+8)}, {vr(DB,16)}''')
    p(f'''s_mul_i32 s45, {sJ}, {3072-1280}
    s_sub_u32 s45, {sACT}, s45
    s_add_u32 s45, s45, {192*256}''')
    for D in (DA,DB):
        p(f'v_add_f32 v{D+12}, {sEPS}, v{D+12}\nv_rcp_f32 v{D+12}, v{D+12}')
    for D in (DA,DB):
        for r in range(12): p(f'v_mul_f32 v{D+r}, v{D+r}, v{D+12}')
    for k,D in enumerate((DA,DB)):
        for i in range(4): p(f'v_cvt_pk_bf16_f32 v{F+4*k+i}, v{D+2*i}, v{D+2*i+1}')
        for i in range(2): p(f'v_cvt_pk_bf16_f32 v{F+8+2*k+i}, v{D+8+2*i}, v{D+9+2*i}')
        p(f'buffer_store_dwordx4 {vr(F+4*k)}, v{ACTO}, {sWS}, s45 offen offset:{512*k} sc1 ;#o')
    p(f'''s_mov_b32 exec_hi, 0
    buffer_store_dwordx4 {vr(F+8)}, v{ACTO}, {sWS}, s45 offen offset:1024 sc1 ;#o
    s_mov_b32 exec_hi, -1''')
ACC=16
XO=(100,101,102,103); WOF=(104,105); RES=106
sXS='s76'; sWSB='s77'; sRO='s78'
def p2_addr(p):
    p(f'''v_lshlrev_b32 v{WOF[0]}, 4, v0
    v_add_u32 v{WOF[1]}, 4096, v{WOF[0]}
    v_mov_b32 v{XO[0]}, v{WOF[0]}
    v_add_u32 v{XO[1]}, {X_T}, v{WOF[0]}
    v_add_u32 v{XO[2]}, {2*X_T}, v{WOF[0]}
    v_add_u32 v{XO[3]}, {3*X_T}, v{WOF[0]}
    s_mul_i32 s45, {sTT}, {4*X_T}
    s_add_u32 s45, s45, {WS_X}
    s_mul_i32 s46, {sC}, {WC_C}
    s_add_u32 s46, s46, {WS_WC}
    s_mul_i32 s47, {sW}, {12*1024}
    s_add_u32 s79, s45, s47
    s_mul_i32 s47, {sW}, {12*5120}
    s_add_u32 s80, s46, s47
    s_mul_i32 s47, {sW}, {5*1024}
    s_add_u32 s81, s45, s47
    s_add_u32 s81, s81, {48*1024}
    s_mul_i32 s47, {sW}, {5*5120}
    s_add_u32 s82, s46, s47
    s_add_u32 s82, s82, {48*5120}
    s_lshl_b32 s45, {sTT}, 2
    s_add_u32 s45, s45, {sW}
    s_mul_i32 s45, s45, {16*1280}
    s_mul_i32 s46, {sC}, 160
    s_add_u32 {sRO}, s45, s46
    v_and_b32 v{TMP}, 15, v0
    v_mul_u32_u24 v{TMP}, 0x500, v{TMP}
    v_lshrrev_b32 v{TMP+1}, 4, v0
    v_lshl_add_u32 v{RES+10}, v{TMP+1}, 3, v{TMP}''')
def p2_loads(k, base):
    out=[]
    xs,ws,kk=('s79','s80',k) if k<12 else ('s81','s82',k-12)
    for n in range(5):
        pre=f's_add_u32 {sWSB}, {ws}, {5120*kk}\n' if n==0 else ''
        out.append(pre+f'buffer_load_dwordx4 {ar(base+4*n)}, v{WOF[n//4]}, {sWS}, {sWSB} offen offset:{1024*(n%4)} sc1')
    for t in range(4):
        pre=f's_add_u32 {sXS}, {xs}, {1024*kk}\n' if t==0 else ''
        out.append(pre+f'buffer_load_dwordx4 {ar(base+20+4*t)}, v{XO[t]}, {sWS}, {sXS} offen sc1')
    return out
def p2_main(p):
    NB=7
    for n in range(5): p(f'buffer_load_dwordx2 {vr(RES+2*n,2)}, v{RES+10}, {sX}, {sRO} offen offset:{32*n}')
    for k in range(6):
        for t in p2_loads(k,36*(k%NB)): p(t)
    mf=[]; st=Stream()
    for k in range(17):
        b=36*(k%NB)
        if k+6<17:
            for t in p2_loads(k+6,36*((k+6)%NB)): st.add(t,len(mf),glue=True)
        for t in range(4):
            for n in range(5):
                D=vr(ACC+4*(4*n+t))
                mf.append(f'{M16} {D}, {ar(b+4*n)}, {ar(b+20+4*t)}, {"0" if k==0 else D}')
    run_pass(p,mf,[],{},[st],depth=4,slots=2,vec=8)
def p2_tail(p):
    a=XO[0]; S=120
    for t in range(4):
        p(f'''s_sub_u32 s45, {sW}, {t+1}
        s_and_b32 s45, s45, 3
        s_mul_i32 s45, s45, 5120
        s_add_u32 s45, s45, {t*4*5120}
        v_lshl_add_u32 v{a+t}, v0, 4, s45''')
    for t in range(4):
        for n in range(5): p(f'ds_write_b128 v{a+t}, {vr(ACC+4*(4*n+t))} offset:{1024*n}')
    p(f'''s_mul_i32 s45, {sW}, {4*5120}
    v_lshl_add_u32 v{a}, v0, 4, s45
    @wait lg
    s_barrier''')
    for u in range(4):
        for n in range(5): p(f'ds_read_b128 {vr(S+20*u+4*n)}, v{a} offset:{5120*u+1024*n}')
    for n in range(5):
        R=S+4*n
        for k in range(4):
            p(f'v_add_f32 v{R+k}, v{R+k}, v{R+20+k}\nv_add_f32 v{R+40+k}, v{R+40+k}, v{R+60+k}')
        for k in range(2):
            p(f'v_lshlrev_b32 v{R+20+2*k}, 16, v{RES+2*n+k}\nv_and_b32 v{R+21+2*k}, 0xffff0000, v{RES+2*n+k}')
        for k in range(4): p(f'v_add_f32 v{R+k}, v{R+k}, v{R+40+k}')
        for k in range(4): p(f'v_add_f32 v{R+k}, v{R+k}, v{R+20+k}')
        p(f'''v_cvt_pk_bf16_f32 v{R}, v{R}, v{R+1}
        v_cvt_pk_bf16_f32 v{R+1}, v{R+2}, v{R+3}
        buffer_store_dwordx2 {vr(R,2)}, v{RES+10}, {sOUT}, {sRO} offen offset:{32*n}''')
```

```python
from asmlib import *
def cost(i):
    if i.kind in('pseudo','label','dir'): return (0,0)
    if i.kind=='trans': return (1,8)
    if i.kind in('salu','nop','smem'): return (1,0)
    if i.kind=='mfma': return (1,8)
    return (1,4)
def mk(text):
    out=[]
    for ln in text.split('\n'):
        ln=ln.strip()
        if ln and not ln.startswith(';'): out.append(Ins(ln))
    return out
class Stream:
    def __init__(s): s.q=[]
    def add(s,text,gate=0,glue=False):
        ins=mk(text) if isinstance(text,str) else list(text)
        if glue: s.q.append((gate,ins))
        else:
            for i in ins: s.q.append((gate,[i]))
    def empty(s): return not s.q
def run_pass(p, mf, reads, opens, streams, depth, slots=7, vec=24, delay=3, maxrd=3, drain=True):
    ri=0; opened=set(r[1] for r in reads if r[1] not in opens)
    lastrd=-99
    dma=Stream()
    def issue_reads(m,budget_s,budget_v,force=False):
        nonlocal ri,lastrd
        n=0
        while ri<len(reads):
            text,st,cons=reads[ri]
            must = cons<=m
            if st not in opened:
                if must or (m-lastrd>=delay and cons-m<=depth):
                    head,fill=opens[st]()
                    p(head);
                    for f in fill: dma.add(f,glue=True)
                    opened.add(st)
                else: break
            if not must:
                if cons-m>depth: break
                k=len(mk(text))
                if n+k>maxrd or k>budget_s or 4*k>budget_v: break
            ins=mk(text); p.extend(ins); n+=len(ins); budget_s-=len(ins); budget_v-=4*len(ins); lastrd=m
            ri+=1
        return budget_s,budget_v
    for m,t in enumerate(mf):
        issue_reads(m,0,0)
        p(t)
        bs,bv=issue_reads(m+0.5 if False else m+1-1e-9,slots,vec) if False else issue_reads(m,slots,vec)
        for st in [dma]+streams:
            while st.q:
                gate,ins=st.q[0]
                if gate>m: break
                cs=sum(cost(i)[0] for i in ins); cv=sum(cost(i)[1] for i in ins)
                if cs>bs or cv>bv:
                    if not(cs>slots or cv>vec) or bs<slots-1: break
                p.extend(ins); bs-=cs; bv-=cv; st.q.pop(0)
            if bs<=0: break
    assert ri==len(reads)
    left=[dma]+(streams if drain else [])
    for st in left:
        while st.q:
            p.extend(st.q.pop(0)[1])
```

```python
import sys
from common import *
import prol, p1, rp2
from p1 import *
HDR=open('parallel_sum__linear_attn_block__dense_activation_mish__prompt.s.ref').read().split('; Override')[0]
def build():
    ks=[]
    p=Prog(); setup(p,'L_end0'); prol.prologue_issue(p); prol.prologue_work(p); p('L_end0:\ns_endpgm'); ks.append(('k0_kernel',p))
    p=Prog(); setup(p,'L_end1'); p1_addr(p)
    for s in range(4):
        for t in dma_stage(s): p(t)
    p1_stats_issue(p); p1_stats_finish(p)
    p1_main(p); p1_tail(p)
    p(f'''s_lshl_b32 s45, s2, 2
    s_add_u32 s45, s45, {sW}
    s_mul_i32 s45, s45, 3072
    s_add_u32 s45, s45, {WS_PQ}''')
    for i in range(3): p(f'buffer_store_dwordx4 {vr(QP+4*i)}, v{LIN(0)}, {sWS}, s45 offen offset:{1024*i}')
    p('L_end1:\ns_endpgm'); ks.append(('k1_kernel',p))
    p=Prog(); setup(p,'L_end2'); p1_addr(p)
    p(f'''s_lshl_b32 s45, s2, 2
    s_add_u32 s45, s45, {sW}
    s_mul_i32 s45, s45, 3072
    s_add_u32 s45, s45, {WS_PQ}''')
    for i in range(3): p(f'buffer_load_dwordx4 {vr(QP+4*i)}, v{LIN(0)}, {sWS}, s45 offen offset:{1024*i}')
    p(f'''v_and_b32 v{TMP}, 31, v0
    v_lshlrev_b32 v{TMP}, 4, v{TMP}''')
    rp2.r_zero(p); p('@wait lg\ns_barrier'); rp2.r_issue(p); rp2.r_work(p)
    p('L_end2:\ns_endpgm'); ks.append(('k2_kernel',p))
    p=Prog(); setup(p,'L_end3'); rp2.p2_addr(p); rp2.p2_main(p); rp2.p2_tail(p)
    p('L_end3:\ns_endpgm'); ks.append(('k3_kernel',p))
    txt=HDR
    for n,_ in ks: txt+=f'; @launch kernel={n} grid=(256,1,1) block=(256,1,1) lds={LDS_BYTES}\n'
    txt+='.amdgcn_target "amdgcn-amd-amdhsa--gfx950"\n.text\n'
    for n,p in ks:
        lines,st=finalize(p.items); print(n,len(lines),st,file=sys.stderr)
        txt+=kernel_text(n,lines)
    txt+='.section .rodata,"a"\n'
    for n,_ in ks: txt+='.p2align 6\n'+descriptor(n)
    return txt
if __name__=='__main__':
    open(sys.argv[1],'w').write(build())
```

```python
import re
VCC=(1106,1107); M0=1124; EXEC=(1126,1127)
TRANS=('v_exp_f32','v_rcp_f32','v_rsq_f32','v_sqrt_f32','v_log_f32','v_rcp_iflag_f32','v_sin_f32','v_cos_f32')
_reg=re.compile(r'^(-|\|)?(abs\()?([vas])(\d+|\[(\d+):(\d+)\])\)?\|?$')
def regs_of(tok):
    t=tok.strip()
    if t=='vcc': return set(VCC)
    if t=='vcc_lo': return {VCC[0]}
    if t=='vcc_hi': return {VCC[1]}
    if t=='exec': return set(EXEC)
    if t=='exec_lo': return {EXEC[0]}
    if t=='exec_hi': return {EXEC[1]}
    if t=='m0': return {M0}
    m=_reg.match(t)
    if not m: return set()
    base={'v':0,'a':256,'s':1000}[m.group(3)]
    if m.group(5) is not None: return set(range(base+int(m.group(5)), base+int(m.group(6))+1))
    return {base+int(m.group(4))}
class Ins:
    __slots__=('text','op','ops','kind','w','r','tags','passes','wide','cdst','srcC','dpp','sdwa','nstates','vsgpr_w')
    def __init__(s,text):
        s.text=text; s.tags=set(); s.passes=0; s.wide=False; s.srcC=set(); s.dpp=False; s.sdwa=False; s.nstates=1
        body=text
        if ';#' in text:
            body,t=text.split(';#',1)
            for kv in t.split(): s.tags.add(kv)
        body=body.split(';')[0].strip()
        s.text=body
        parts=body.split(None,1)
        s.op=parts[0]
        rest=parts[1] if len(parts)>1 else ''
        ops=[];cur='';d=0
        for ch in rest:
            if ch in '[(': d+=1
            if ch in '])': d-=1
            if ch==',' and d==0: ops.append(cur.strip());cur=''
            else: cur+=ch
        if cur.strip(): ops.append(cur.strip())
        mods=''
        if ops:
            lp=ops[-1].split(None,1)
            if len(lp)>1 and not ops[-1].startswith('hwreg'):
                ops[-1]=lp[0]; mods=lp[1]
        s.ops=ops
        op=s.op
        R=[regs_of(o) for o in ops]
        allr=lambda L:set().union(*L) if L else set()
        s.w=set(); s.r=set()
        if op.endswith(':'): s.kind='label'; s.nstates=0
        elif op.startswith('.') : s.kind='dir'; s.nstates=0
        elif op.startswith('@'): s.kind='pseudo'; s.nstates=0
        elif op.startswith('v_mfma'):
            s.kind='mfma'; s.w=R[0]; s.r=allr(R[1:]); s.srcC=R[3]; s.passes=8 if '32x32' in op else 4
        elif op.startswith('v_'):
            s.kind='trans' if op.replace('_e32','').replace('_e64','') in TRANS else 'valu'
            if op.startswith('v_dot'): s.kind='dot'
            if 'permlane' in op and 'swap' in op: s.w=allr(R[:2]); s.r=allr(R[:2]); s.kind='perm'
            elif op.startswith('v_cmpx'): s.w=set(EXEC)|R[0]; s.r=allr(R[1:])
            elif op.startswith(('v_add_co','v_sub_co','v_addc_co','v_subb_co','v_subrev_co','v_mad_u64_u32','v_div_scale')): s.w=allr(R[:2]); s.r=allr(R[2:])
            else:
                s.w=R[0]; s.r=allr(R[1:])
                if op.startswith(('v_fmac','v_mac','v_dot2c','v_writelane','v_fmaak')) and not op.startswith('v_fmaak'): s.r|=R[0]
                if op.startswith('v_cndmask') and len(ops)==3: s.r|=set(VCC)
            if 'row_' in mods or 'quad_perm' in mods or 'wave_' in mods or op.endswith('_dpp'): s.dpp=True; s.r|=s.w
            if 'dst_sel' in mods or 'op_sel' in mods and op.startswith('v_cvt'): s.sdwa=True; s.r|=s.w
            s.r|=set(EXEC)
        elif op.startswith('ds_'):
            s.kind='ds'
            if op.startswith(('ds_read','ds_bpermute','ds_permute','ds_swizzle')): s.w=R[0]; s.r=allr(R[1:])
            else: s.r=allr(R)
        elif op.startswith(('buffer_','global_')):
            s.kind='vm'
            islds=(' lds' in ' '+mods) or '_lds_' in op
            if op.startswith(('buffer_wbl2','buffer_inv')): pass
            elif 'load' in op and not islds: s.w=R[0]; s.r=allr(R[1:])
            elif 'atomic' in op and 'sc0' in mods: s.w=R[0]; s.r=allr(R[1:]) if op.startswith('global') else allr(R)
            else: s.r=allr(R)
            if islds: s.r|={M0}; s.tags.add('dma')
            if 'store' in op and ('x4' in op or 'x3' in op):
                s.wide=True; s.cdst=R[0] if op.startswith('buffer') else R[1]
        elif op.startswith(('s_load','s_buffer_load','s_memtime','s_memrealtime')):
            s.kind='smem'; s.w=R[0]; s.r=allr(R[1:])
        elif op=='s_nop': s.kind='nop'; s.nstates=int(ops[0],0)+1
        elif op.startswith('s_'):
            s.kind='salu'
            if op.startswith(('s_cmp','s_waitcnt','s_barrier','s_cbranch','s_branch','s_setprio','s_sleep','s_endpgm','s_bitcmp')): s.r=allr(R)
            else:
                s.w=R[0]; s.r=allr(R[1:])
                if 'saveexec' in op: s.w|=set(EXEC); s.r|=set(EXEC)
            if op.startswith('s_cbranch_vcc'): s.r|=set(VCC)
        else: raise ValueError('unknown instr: '+text)
class Prog:
    def __init__(s): s.items=[]
    def __call__(s,text):
        for ln in text.split('\n'):
            ln=ln.strip()
            if not ln or ln.startswith(';'): continue
            s.items.append(Ins(ln))
    def extend(s,lst):
        for x in lst:
            if isinstance(x,Ins): s.items.append(x)
            else: s(x)
def isv(x): return x<512
def finalize(items, check_only_warn=False):
    out=[]; vmq=[]; lgq=[]; hist=[]
    stats={'nop':0,'wait':0}
    def emit(i):
        out.append(i.text if i.kind not in('label','dir') else i.text)
        hist.append(i)
        if len(hist)>40: hist.pop(0)
    def dowait(vm=None,lg=None):
        nonlocal vmq,lgq
        p=[]
        if vm is not None:
            vm=min(vm,63)
            p.append(f'vmcnt({vm})'); vmq=vmq[len(vmq)-vm:] if vm>0 else []
        if lg is not None:
            lg=min(lg,15)
            p.append(f'lgkmcnt({lg})'); lgq=lgq[len(lgq)-lg:] if lg>0 else []
        if p:
            if hist and hist[-1].op=='s_waitcnt' and out[-1]==hist[-1].text and getattr(hist[-1],'tags',None)=={'auto'}:
                old=dict(re.findall(r'(\w+)\((\d+)\)',out[-1]))
                for k,v in re.findall(r'(\w+)\((\d+)\)',' '.join(p)): old[k]=str(min(int(v),int(old.get(k,99))))
                t='s_waitcnt '+' '.join(f'{k}({old[k]})' for k in ('vmcnt','lgkmcnt') if k in old)
                out[-1]=t; hist[-1].text=t
            else:
                emit(Ins('s_waitcnt '+' '.join(p)+' ;#auto')); stats['wait']+=1
    for ins in items:
        if ins.kind=='pseudo':
            if ins.op=='@vmwait':
                need=None; tg=set(ins.ops[0].split('+'))
                for k,o in enumerate(vmq):
                    if o.tags&tg: need=k
                if need is not None: dowait(vm=len(vmq)-1-need)
            elif ins.op=='@lgwait':
                need=None; tg=set(ins.ops[0].split('+'))
                for k,o in enumerate(lgq):
                    if o.tags&tg: need=k
                if need is not None: dowait(lg=(0 if any(o.kind=='smem' for o in lgq) else len(lgq)-1-need))
            elif ins.op=='@wait':
                a=ins.ops[0]
                vm=0 if (a in('vm','all') and vmq) else None
                lg=0 if (a in('lg','all') and lgq) else None
                dowait(vm,lg)
            elif ins.op=='@forcewait':
                dowait(0,0)
            elif ins.op=='@nohist': hist.clear()
            else: raise ValueError(ins.text)
            continue
        if ins.kind=='salu' and ins.op=='s_waitcnt':
            m=re.search(r'vmcnt\((\d+)\)',ins.text);
            if m:
                n=int(m.group(1)); vmq=vmq[len(vmq)-n:] if n>0 and len(vmq)>n else (vmq if n>0 else [])
            m=re.search(r'lgkmcnt\((\d+)\)',ins.text)
            if m:
                n=int(m.group(1)); lgq=lgq[len(lgq)-n:] if n>0 and len(lgq)>n else (lgq if n>0 else [])
            emit(ins); continue
        touch=ins.r|ins.w
        nv=None; nl=None
        for k,o in enumerate(vmq):
            if o.w&touch: nv=len(vmq)-1-k
        for k,o in enumerate(lgq):
            if o.w&touch: nl=len(lgq)-1-k
        if nl is not None and any(o.kind=='smem' for o in lgq): nl=0
        if ins.kind=='vm' and len(vmq)>=63 and nv is None: nv=62
        if nv is not None or nl is not None: dowait(nv,nl)
        need=0; dist=0
        for h in reversed(hist):
            if h.kind in('label','dir'): continue
            req=0
            hv=h.kind in('valu','trans','dot','perm')
            cv=ins.kind in('valu','trans','dot','perm')
            wv={x for x in h.w if isv(x)}; ws_={x for x in h.w if not isv(x)}
            if hv:
                if ins.kind=='mfma' and wv&ins.r: req=max(req,2)
                if ins.kind=='mfma' and ws_&set(EXEC): req=max(req,4)
                if h.kind=='trans' and cv and wv&ins.r: req=max(req,1)
                if h.kind=='dot' and (cv or ins.kind in('mfma','vm','ds')) and wv&touch and not(ins.op==h.op and not (wv&set().union(*[regs_of(o) for o in ins.ops[1:3]]))): req=max(req,3)
                if ins.kind=='vm' and ws_&ins.r: req=max(req,5)
                if cv and (ws_-set(EXEC))&ins.r: req=max(req,4 if ins.op.startswith(('v_readlane','v_writelane')) else 2)
                if ins.op.startswith(('v_readfirstlane','v_readlane')) and wv&ins.r: req=max(req,1)
                if (ins.dpp or ins.kind=='perm') and wv&ins.r: req=max(req,2)
                if ins.dpp and ws_&set(EXEC): req=max(req,5)
                if h.sdwa and cv and wv&touch: req=max(req,1)
                if ins.op.startswith('s_cbranch_vcc') and ws_&set(VCC): req=max(req,5)
                if ins.kind=='salu' and ws_&ins.r: req=max(req,1)
            if h.kind=='mfma':
                big=h.passes==8
                if ins.kind=='mfma':
                    ab=regs_of(ins.ops[1])|regs_of(ins.ops[2])
                    if h.w&ab: req=max(req,12 if big else 8)
                    if h.w&ins.srcC and not(h.w==ins.srcC and h.passes==ins.passes): req=max(req,10 if big else 6)
                    if h.w&ins.w and not (h.w==ins.w and h.passes==ins.passes and ins.srcC==ins.w): req=max(req,10 if big else 6)
                elif cv or ins.kind in('vm','ds'):
                    if h.w&touch: req=max(req,12 if big else 8)
                    if cv and h.srcC&ins.w: req=max(req,7 if big else 3)
            if h.kind=='salu' and M0 in h.w and ins.kind=='vm' and M0 in ins.r: req=max(req,1)
            if h.kind=='salu' and ws_&set(EXEC) and ins.dpp: req=max(req,1)
            if h.kind=='vm' and h.wide and (h.cdst&ins.w): req=max(req,2)
            if req>dist: need=max(need,req-dist)
            dist+=h.nstates
            if dist>=20: break
        while need>0:
            n=min(need,16); emit(Ins(f's_nop {n-1}')); need-=n; stats['nop']+=1
        emit(ins)
        if ins.kind=='vm':
            if 'nocount' not in ins.tags: vmq.append(ins)
        elif ins.kind in('ds','smem'):
            lgq.append(ins)
    return out,stats
```

```python
from asmlib import *
KN='parallel_sum__linear_attn_block__dense_activation_mish__prompt_kernel'
WS_FLAG=0
WS_WQ=0x10000;  WQ_J=163840; WQ_QOFF=122880
WS_WC=WS_WQ+16*WQ_J+0x1000; WC_C=68*5120
WS_X=WS_WC+8*WC_C+0x1000;   X_T=272*256
WS_ST=WS_X+128*X_T+0x1000
WS_RS=WS_ST+2048*16
WS_CS=WS_RS+2048*4;  CS_P=896
WS_KV=WS_CS+256*CS_P; KV_P=3584
WS_PQ=WS_KV+256*KV_P
WS_END=WS_PQ+256*4*3072
sX,sWQ,sWO,sW1,sB1,sW2,sOUT,sWS,sDBG=[f's[{4+4*i}:{7+4*i}]' for i in range(9)]
sW='s40'; sTI='s41'; sJ='s42'; sTT='s43'; sC='s44'
SLOT=28672; NSLOT=5
L_MISC=SLOT*NSLOT
L_PB=4*SLOT
LDS_BYTES=163840
LOG2E=1.4426950408889634
def f32(x):
    import struct
    return '0x%08x'%struct.unpack('<I',struct.pack('<f',x))[0]
def setup(p, end_label, need=('x','wq','wo','w1','b1','w2','out','ws','dbg')):
    tab={'x':(4,0,2048*1280),'wq':(8,8,640*3840),'wo':(12,16,640*1280),'w1':(16,32,640*3072),'b1':(20,40,3072),
         'w2':(24,48,1536*1280),'out':(28,56,2048*1280),'dbg':(36,64,256),'ws':(32,72,globals()['WS_END'])}
    p(f's_cmp_ge_u32 s2, 256\ns_cbranch_scc1 {end_label}')
    for n in need:
        r,o,sz=tab[n]; p(f's_load_dwordx2 s[{r}:{r+1}], s[0:1], {o}')
    for n in need:
        r,o,sz=tab[n]; p(f's_mov_b32 s{r+2}, {sz}\ns_mov_b32 s{r+3}, 0x20000')
    p(f'''v_lshrrev_b32 v1, 6, v0
    v_and_b32 v0, 63, v0
    v_readfirstlane_b32 {sW}, v1
    s_and_b32 s45, s2, 7
    s_lshr_b32 s46, s2, 3''')
    p(f'''s_and_b32 s47, s45, 1
    s_lshl_b32 s47, s47, 3
    s_and_b32 s48, s46, 7
    s_add_u32 {sTI}, s47, s48
    s_lshr_b32 s47, s45, 1
    s_lshl_b32 s47, s47, 2
    s_lshr_b32 s48, s46, 3
    s_add_u32 {sJ}, s47, s48''')
    p(f'''s_lshr_b32 s47, s45, 1
    s_lshl_b32 s47, s47, 3
    s_and_b32 s48, s46, 7
    s_add_u32 {sTT}, s47, s48
    s_and_b32 s47, s45, 1
    s_lshl_b32 s47, s47, 2
    s_lshr_b32 s48, s46, 3
    s_add_u32 {sC}, s47, s48''')
def kernel_text(name, lines):
    return f'''.globl {name}
.p2align 8
.type {name},@function
{name}:
'''+'\n'.join(lines)+'\n'
def descriptor(name, vgpr=512, accum=256, sgpr=102):
    return f'''.amdhsa_kernel {name}
  .amdhsa_next_free_vgpr {vgpr}
  .amdhsa_next_free_sgpr {sgpr}
  .amdhsa_accum_offset {accum}
  .amdhsa_group_segment_fixed_size 0
  .amdhsa_kernarg_size 80
  .amdhsa_user_sgpr_count 2
  .amdhsa_user_sgpr_kernarg_segment_ptr 1
  .amdhsa_system_sgpr_workgroup_id_x 1
.end_amdhsa_kernel
'''
def vr(b,n=4): return f'v[{b}:{b+n-1}]'
def ar(b,n=4): return f'a[{b}:{b+n-1}]'
M32='v_mfma_f32_32x32x16_bf16'; M16='v_mfma_f32_16x16x32_bf16'
WS_PROF=WS_END; WS_END=WS_PROF+8*256*4*64
PROF={'on':False,'n':0,'names':[]}
def stamp(p,name):
    if not PROF['on']: return
    i=PROF['n']; assert i<9
    p(f's_memrealtime s[{84+2*i}:{85+2*i}]'); PROF['n']+=1; PROF['names'].append(name)
def stamp_text(name):
    if not PROF['on']: return ''
    i=PROF['n']; assert i<9
    PROF['n']+=1; PROF['names'].append(name); return f's_memrealtime s[{84+2*i}:{85+2*i}]\n'
def prof_flush(p,kidx):
    if not PROF['on']: return
    n=PROF['n']
    p('@wait all')
    for i in range(n): p(f'v_writelane_b32 v1, s{84+2*i}, {i}')
    p(f's_getreg_b32 s45, hwreg(HW_REG_XCC_ID)\nv_writelane_b32 v1, s45, 15')
    p(f'''s_lshl_b32 s45, s2, 2
    s_add_u32 s45, s45, {sW}
    s_lshl_b32 s45, s45, 6
    s_add_u32 s45, s45, {WS_PROF+kidx*65536}
    v_lshlrev_b32 v2, 2, v0
    s_mov_b64 exec, 0xffff
    buffer_store_dword v1, v2, {sWS}, s45 offen
    s_mov_b64 exec, -1''')
    PROF.setdefault('all',{})[kidx]=list(PROF['names']); PROF['n']=0; PROF['names']=[]
```

```python
from asmlib import *
from sched import cost, mk, Stream
def run_pass(p, mf, reads, opens, streams, depth=9, slots=7, vec=24, delay=3, maxrd=4, prime=4, drain=True, hooks=None, late=None, pre=None):
    ri=0; opened=set(r[1] for r in reads if r[1] not in opens); lastrd=-99
    hooks=hooks or {}; late=late or {}
    def issue(m,bs,bv,dep,mx):
        nonlocal ri,lastrd
        n=0
        while ri<len(reads):
            text,st,cons=reads[ri]; must=cons<=m
            if st not in opened:
                if must or (m-lastrd>=delay and cons-m<=dep and m>=late.get(st,-1)):
                    p(opens[st](m)); opened.add(st)
                else: break
            ins=mk(text); k=len(ins)
            if not must:
                if cons-m>dep or n+k>mx or k>bs or 4*k>bv: break
            p.extend(ins); n+=k; bs-=k; bv-=4*k; lastrd=m; ri+=1
        return bs,bv
    for m,t in enumerate(mf):
        if m==0: issue(0,14,99,prime,14)
        issue(m,0,0,0,0)
        p(t)
        if m in hooks: p(hooks[m](m))
        bs,bv=slots,vec
        if pre is not None:
            issue(m,0,0,depth,0)
            nv=0
            while pre.q and pre.q[0][0]<=m:
                ins=pre.q[0][1]; isv=any(i.kind=='vm' for i in ins)
                cs=sum(cost(i)[0] for i in ins); cv=sum(cost(i)[1] for i in ins)
                if (isv and nv>=1) or (cs>bs and bs<slots): break
                p.extend(ins); bs-=cs; bv-=cv; pre.q.pop(0); nv+=isv
        bs,bv=issue(m,bs,bv,depth,maxrd)
        for st in streams:
            while st.q:
                gate,ins=st.q[0]
                if gate>m: break
                cs=sum(cost(i)[0] for i in ins); cv=sum(cost(i)[1] for i in ins)
                if cs>bs or cv>bv:
                    if not(cs>slots or cv>vec) or bs<slots-1: break
                p.extend(ins); bs-=cs; bv-=cv; st.q.pop(0)
            if bs<=0: break
    assert ri==len(reads)
    if pre is not None: flush(p,pre)
    if drain:
        for st in streams: flush(p,st)
def flush(p,st,upto=None):
    while st.q and (upto is None or st.q[0][0]<=upto): p.extend(st.q.pop(0)[1])
```

```python
import sys, json
from common import *
import common
from sched2 import *
OPT=dict(rot=1, sig=3, pp=7, depth=9, delay=3, maxrd=4, mc=18, kdepth=9, go=7, stamps='', wpre=8)
XR=lambda g,s:1+4*g+s
W1R=lambda g:13+g
ACW=16; ACK=64; ACV=80; ACR=96; ACQ=112
SX=128; RSTD=132; RL=133; M2R=134; RSC=136; RLC=152; SWB=168; TMP=196; QP=220
LIN=lambda g:232+g
XD=(235,236); XD4=(96,97,98,99); WD=(237,238,239); ACTO=240; KVO=241; EXW=245; EXA=246; EXB=247; EXT=248
WOF=(232,249); XO=(232,250,251,252); RESA=253; SIG=254; VAL=255
NEG=2; ZER=6; A2Z=10; RQ=12; RWA=13; RRA=14
UA=64; UD=68; WCD=80
POOL=160; NP=24
ACC=16; RES=2; RB=100
sXB='s60'; sLX='s61'; sW1B='s62'; sLW='s63'; sKVB='s64'; sL6='s65'; sQB='s66'; sOST='s67'; sACT='s68'; sC1='s69'; sEPS='s70'
sT0='s71'; sKVP='s72'; sROT='s73'; sMV='s[74:75]'; sRX='s76'; sRW='s77'; sRK='s78'
sXA='s79'; sWA='s80'; sXO='s81'; sWO2='s82'; sRO='s83'
sOOB='0x40000000'
def slot(s): return s%NSLOT if s<10 else (s+1)%NSLOT
grp=lambda sl:sl//2
L_WC=0; L_EX=4*SLOT; L_A2=3*SLOT; A2P=144; L_CS=L_MISC
BOUND=200000
fallbacks=[]
def st_(name):
    return stamp_text(name) if name in OPT['stamps'].split(',') else ''
def fallback(name, body, test):
    fallbacks.append(f'''L_fb_{name}:
    s_mov_b32 s3, 0
    L_fbl_{name}:
    {body}
    s_waitcnt vmcnt(0)
    {test}
    s_cbranch_scc1 L_ok_{name}
    s_add_u32 s3, s3, 1
    s_cmp_lt_u32 s3, {BOUND}
    s_cbranch_scc1 L_fbl_{name}
    s_branch L_ok_{name}''')
    return f'{test}\ns_cbranch_scc0 L_fb_{name}\nL_ok_{name}:'
T=200; U=16
vQ,vW1,vS,vS2=T+4,T+5,T+7,T+9
aQ,aQ2,aW,aW2=T+6,T+8,T+10,T+11
dq=[T+12,T+13,T+14]; vKC=T+15
PX=T+16
A1,A2o=U+84,U+88
def addr_first(p):
    a,b,c,d=T,T+1,T+2,T+3
    p(f'''v_lshrrev_b32 v{a}, 4, v0
    v_and_b32 v{b}, 15, v0
    v_min_u32 v{c}, 14, v{b}
    v_mul_u32_u24 v{d}, 52, v{c}
    v_lshrrev_b32 v{d}, 8, v{d}
    v_mul_u32_u24 v{vS}, 5, v{d}
    v_sub_u32 v{c}, v{c}, v{vS}
    v_add_u32 v{vS}, 1, v{d}
    v_cmp_gt_u32 vcc, 2, v{d}
    v_mul_u32_u24 v{vS}, 0x500, v{vS}
    v_cndmask_b32 v{vS}, 0, v{vS}, vcc
    v_lshl_add_u32 v{vS}, v{c}, 4, v{vS}
    v_mul_u32_u24 v{vQ}, 0xf00, v{a}
    v_add_u32 v{vQ}, v{vQ}, v{vS}
    v_min_u32 v{c}, 11, v{b}
    v_mul_u32_u24 v{vW1}, 0xc00, v{a}
    v_lshl_add_u32 v{vW1}, v{c}, 4, v{vW1}
    v_lshrrev_b32 v{a}, 5, v0
    v_and_b32 v{b}, 31, v0
    v_mul_u32_u24 v{vS}, 0x500, v{a}
    v_lshl_add_u32 v{vS2}, v{b}, 3, v{vS}
    v_lshl_add_u32 v{vS}, v{b}, 4, v{vS}''')
    p(f'''s_lshl_b32 s45, {sTI}, 4
    s_add_u32 s45, s45, {sJ}
    s_lshl_b32 s45, s45, 2
    s_add_u32 s45, s45, {sW}
    s_lshl_b32 s54, s45, 1
    s_mul_i32 s55, s54, 1280
    s_mul_i32 s45, {sTI}, 40
    s_lshl_b32 s46, {sW}, 2
    s_add_u32 s46, s46, s45
    s_mul_i32 s47, {sJ}, 80
    s_mul_i32 s48, s46, 3840
    s_add_u32 s48, s48, s47
    s_add_u32 s49, s48, {16*3840}
    s_mul_i32 s56, {sJ}, 192
    s_mul_i32 s51, s46, 3072
    s_add_u32 s51, s51, s56
    s_add_u32 s52, s51, {16*3072}
    s_min_u32 s57, {sW}, 1
    s_lshl_b32 s46, s57, 2
    s_add_u32 s46, s46, s45
    s_add_u32 s46, s46, 32
    s_mul_i32 s50, s46, 3840
    s_add_u32 s50, s50, s47
    s_mul_i32 s53, s46, 3072
    s_add_u32 s53, s53, s56
    s_lshl_b32 s57, s57, 10
    s_lshl_b32 s56, {sW}, 10''')
    c,d,e=T,T+1,T+2
    p(f'''v_lshrrev_b32 v{c}, 3, v0
    v_mul_u32_u24 v{c}, 0x500, v{c}
    v_and_b32 v{d}, 7, v0
    v_lshrrev_b32 v{e}, 4, v0
    v_xor_b32 v{d}, v{d}, v{e}
    v_lshl_add_u32 v{XD4[0]}, v{d}, 4, v{c}
    v_xor_b32 v{d}, 4, v{d}
    v_lshl_add_u32 v{XD4[1]}, v{d}, 4, v{c}
    v_add_u32 v{XD4[2]}, {16*1280-2048}, v{XD4[0]}
    v_add_u32 v{XD4[3]}, {24*1280-3072}, v{XD4[1]}
    v_add_u32 v{XD4[1]}, {8*1280-1024}, v{XD4[1]}''')
    for n in range(3):
        p(f'''v_add_u32 v{c}, {64*n}, v0
        v_mul_u32_u24 v{d}, 0xaab, v{c}
        v_lshrrev_b32 v{d}, 15, v{d}
        v_mul_u32_u24 v{e}, 12, v{d}
        v_sub_u32 v{c}, v{c}, v{e}
        v_mul_u32_u24 v{d}, 0xc00, v{d}
        v_lshl_add_u32 v{WD[n]}, v{c}, 4, v{d}''')
        if n: p(f'v_subrev_u32 v{WD[n]}, {1024*n}, v{WD[n]}')
    p(f'''s_lshl_b32 s45, {sTI}, 2
    s_add_u32 s45, s45, {sW}
    s_lshl_b32 {sT0}, s45, 5
    s_mul_i32 {sXB}, {sT0}, 1280
    s_lshl_b32 {sLX}, {sW}, 12
    s_mul_i32 s46, {sW}, {16*3072}
    s_mul_i32 s47, {sJ}, 192
    s_add_u32 {sW1B}, s46, s47
    s_mul_i32 {sLW}, {sW}, 3072
    s_add_u32 {sLW}, {sLW}, 16384
    v_lshlrev_b32 v{LIN(0)}, 4, v0''')
    if OPT['rot']:
        p(f'''s_and_b32 s45, {sTI}, 7
        s_and_b32 s46, {sJ}, 3
        s_mul_i32 s46, s46, 5
        s_lshr_b32 s46, s46, 1
        s_add_u32 s45, s45, s46
        s_cmp_ge_u32 s45, 10
        s_cselect_b32 s46, 10, 0
        s_sub_u32 {sROT}, s45, s46''')
def addr_prol(p):
    a,b,c,d,e,f_=T,T+1,T+2,T+3,U,U+1
    p(f'''v_bfe_u32 v{a}, v0, 4, 1
    v_bfe_u32 v{b}, v0, 1, 1
    v_lshl_add_u32 v{a}, v{a}, 1, v{b}
    v_bfe_u32 v{b}, v0, 2, 2
    v_and_b32 v{c}, 1, v0
    v_lshlrev_b32 v{c}, 3, v{c}
    v_lshl_add_u32 v{b}, v{b}, 8, v{c}
    v_lshrrev_b32 v{d}, 5, v0
    s_cmp_eq_u32 {sW}, 2
    s_cselect_b32 s45, 5, 1
    s_mul_i32 s46, {sW}, 5
    s_cmp_eq_u32 {sW}, 3
    s_cselect_b32 s46, 10, s46
    s_cmp_eq_u32 {sW}, 2
    s_cselect_b32 s46, 4, s46
    s_min_u32 s47, {sW}, 2
    s_lshl_b32 s47, s47, 2
    v_mov_b32 v{e}, s46
    v_mad_u32_u24 v{e}, v{a}, s45, v{e}
    v_min_u32 v{e}, 15, v{e}
    v_lshl_add_u32 v{aQ2}, v{e}, 4, v{b}
    v_add_u32 v{aQ2}, {L_PB}, v{aQ2}
    v_lshl_add_u32 v{aQ}, v{d}, 11, v{aQ2}
    v_add_u32 v{e}, s47, v{a}
    v_lshl_add_u32 v{aW2}, v{e}, 4, v{b}
    v_add_u32 v{aW2}, {L_PB+10240}, v{aW2}
    v_lshl_add_u32 v{aW}, v{d}, 11, v{aW2}
    v_mov_b32 v{e}, 0x3f803f80
    v_cmp_gt_u32 vcc, 32, v0
    v_mov_b32 v{f_}, 0''')
    for i in range(4): p(f'v_mov_b32 v{A1+i}, v{e}\nv_cndmask_b32 v{A2o+i}, v{f_}, v{e}, vcc')
    p(f'''s_mul_i32 s45, {sTI}, 5
    s_movk_i32 s46, 3072
    s_cmp_eq_u32 {sW}, 3
    s_cselect_b32 s46, 1024, s46
    v_and_b32 v{c}, 31, v0
    v_lshlrev_b32 v{c}, 4, v{c}''')
    for n in range(3):
        p(f'''v_add_u32 v{a}, s45, v{d}
        v_add_u32 v{a}, {2*n}, v{a}
        v_and_b32 v{b}, 1, v{a}
        v_lshrrev_b32 v{a}, 1, v{a}
        v_lshl_add_u32 v{b}, v{b}, 9, v{c}
        v_mad_u32_u24 v{dq[n]}, v{a}, s46, v{b}''')
    p(f'''s_lshl_b32 s45, {sW}, 10
    v_add_u32 v{vKC}, s45, v{LIN(0)}
    v_mov_b32 v{a}, {sOOB}
    v_cmp_gt_u32 vcc, 3584, v{vKC}
    s_lshl_b32 s45, {sJ}, 4
    s_add_u32 s45, s45, {sTI}
    v_cndmask_b32 v{vKC}, v{a}, v{vKC}, vcc
    s_mul_i32 s45, s45, {KV_P}
    s_add_u32 {sKVP}, s45, {WS_KV}
    s_mul_i32 s46, {sJ}, {WQ_J}
    s_add_u32 {sKVB}, s46, {WS_WQ}
    s_add_u32 {sQB}, {sKVB}, {WQ_QOFF}''')
def addr_p1lds(p):
    a,b,c,d=T,T+1,T+2,T+3
    p(f'''v_and_b32 v{a}, 31, v0
    v_lshrrev_b32 v{b}, 5, v0
    v_bfe_u32 v{c}, v0, 1, 3
    v_xor_b32 v{c}, v{c}, v{b}
    v_lshlrev_b32 v{c}, 4, v{c}
    v_lshl_add_u32 v{c}, v{a}, 7, v{c}
    v_add_u32 v{c}, {sLX}, v{c}''')
    for s in range(4):
        p(f'v_xor_b32 v{XR(0,s)}, {32*s}, v{c}')
        p(f'v_add_u32 v{XR(1,s)}, {2*SLOT}, v{XR(0,s)}\nv_add_u32 v{XR(2,s)}, {4*SLOT}, v{XR(0,s)}')
    p(f'''v_bfe_u32 v{c}, v0, 2, 2
    v_lshl_add_u32 v{c}, v{b}, 3, v{c}
    v_mul_u32_u24 v{c}, 192, v{c}
    v_bfe_u32 v{d}, v0, 4, 1
    v_lshl_add_u32 v{c}, v{d}, 5, v{c}
    v_and_b32 v{d}, 3, v0
    v_lshl_add_u32 v{W1R(0)}, v{d}, 3, v{c}
    v_add_u32 v{W1R(1)}, {2*SLOT}, v{W1R(0)}
    v_add_u32 v{W1R(2)}, {4*SLOT}, v{W1R(0)}
    v_add_u32 v{LIN(1)}, {2*SLOT}, v{LIN(0)}
    v_add_u32 v{LIN(2)}, {4*SLOT}, v{LIN(0)}''')
    p(f'''s_lshl_b32 s45, {sTI}, 5
    s_add_u32 s45, s45, {sJ}
    s_lshl_b32 s45, s45, 2
    s_lshl_b32 s46, {sJ}, 5
    s_add_u32 s46, s46, {sTI}
    s_lshl_b32 s46, s46, 2
    s_add_u32 s46, s46, 2048
    s_cmp_eq_u32 {sW}, 0
    s_cselect_b32 s45, s45, {sOOB}
    s_cselect_b32 s46, s46, {sOOB}
    v_mov_b32 v{SIG}, {sOOB}
    v_writelane_b32 v{SIG}, s45, 0
    v_writelane_b32 v{SIG}, s46, 1
    v_mov_b32 v{VAL}, 1''')
def startup(p):
    tab={'x':(4,0,2048*1280),'wq':(8,8,640*3840),'w1':(16,32,640*3072),'ws':(32,72,common.WS_END),'dbg':(36,64,256),
         'wo':(12,16,640*1280),'b1':(20,40,3072),'w2':(24,48,1536*1280),'out':(28,56,2048*1280)}
    p('s_cmp_ge_u32 s2, 256\ns_cbranch_scc1 L_end')
    for n,(r,o,sz) in tab.items(): p(f's_load_dwordx2 s[{r}:{r+1}], s[0:1], {o}')
    p(f'''v_lshrrev_b32 v1, 6, v0
    v_and_b32 v0, 63, v0
    v_readfirstlane_b32 {sW}, v1
    s_and_b32 s45, s2, 7
    s_lshr_b32 s46, s2, 3
    s_and_b32 s47, s45, 1
    s_lshl_b32 s50, s47, 3
    s_and_b32 s48, s46, 7
    s_add_u32 {sTI}, s50, s48
    s_lshr_b32 s49, s45, 1
    s_lshl_b32 s50, s49, 2
    s_lshr_b32 s51, s46, 3
    s_add_u32 {sJ}, s50, s51
    s_lshl_b32 s50, s49, 3
    s_add_u32 {sTT}, s50, s48
    s_lshl_b32 s50, s47, 2
    s_add_u32 {sC}, s50, s51''')
    for n,(r,o,sz) in tab.items(): p(f's_mov_b32 s{r+2}, {sz}\ns_mov_b32 s{r+3}, 0x20000')
    addr_first(p); addr_prol(p)
    p('@wait lg')
    p(st_('karg'))
    p(f'''s_lshl_b32 s45, s2, 2
    s_or_b32 s58, s45, {sW}
    s_cmp_eq_u32 s58, 0
    s_cbranch_scc0 L_nz
    v_mov_b32 v{U}, 0
    v_mov_b32 v{U+1}, 0
    v_mov_b32 v{U+2}, 0
    v_mov_b32 v{U+3}, 0''')
    for i in range(4): p(f'buffer_store_dwordx4 {vr(U)}, v{LIN(0)}, {sWS}, 0 offen offset:{1024*i} sc1 ;#nocount')
    p(f's_movk_i32 s45, 4096\nbuffer_store_dwordx4 {vr(U)}, v{LIN(0)}, {sWS}, s45 offen sc1 ;#nocount\nL_nz:')
    p(f'''buffer_load_dwordx4 {vr(PX)}, v{vS}, {sX}, s55 offen
    buffer_load_dwordx4 {vr(PX+4)}, v{vS}, {sX}, s55 offen offset:512
    buffer_load_dwordx2 {vr(PX+8,2)}, v{vS2}, {sX}, s55 offen offset:1024''')
    for n in range(3):
        m0=f's_add_u32 m0, s56, {L_PB+4096*n}' if n<2 else f's_add_u32 m0, s57, {L_PB+8192}'
        m1=f's_add_u32 m0, s56, {L_PB+10240+4096*n}' if n<2 else f's_add_u32 m0, s57, {L_PB+10240+8192}'
        p(f'''{m0}
        buffer_load_dwordx4 v{vQ}, {sWQ}, s{48+n} offen lds ;#pl
        {m1}
        buffer_load_dwordx4 v{vW1}, {sW1}, s{51+n} offen lds ;#pl''')
def dma_stage(s,part=None):
    out=dma_stage_(s)
    k=[i for i,t in enumerate(out) if 'buffer_' in t][0]
    return out if part is None else (out[:k] if part=='pre' else out[k:])
def dma_stage_(s):
    SB=slot(s)*SLOT; out=[]
    R=OPT['rot']
    if s<10:
        if R: out.append(f's_add_u32 s46, {sROT}, {s}\ns_cmp_ge_u32 s46, 10\ns_cselect_b32 s47, 10, 0\ns_sub_u32 s46, s46, s47\ns_lshl_b32 {sRX}, s46, 7\ns_add_u32 {sRX}, {sRX}, {sXB}')
        if R: out.append(f's_mul_i32 {sRW}, s46, {64*3072}\ns_add_u32 {sRW}, {sRW}, {sW1B}')
        else: out.append(f's_add_u32 {sRW}, {sW1B}, {s*64*3072}')
        if not R: out.append(f's_add_u32 {sRX}, {sXB}, {128*s}')
        out.append(f's_add_u32 m0, {sLX}, {SB}')
        for i in range(4):
            out.append(f'buffer_load_dwordx4 v{XD4[i]}, {sX}, {sRX} offen offset:{1024*i} lds ;#st{s}')
        out[-1]+=f'\ns_add_u32 m0, {sLW}, {SB}'
        for n in range(3):
            out.append(f'buffer_load_dwordx4 v{WD[n]}, {sW1}, {sRW} offen offset:{1024*n} lds ;#st{s}')
    elif s<15:
        if R: out.append(f's_lshl_b32 s46, {sROT}, 1\ns_add_u32 s46, s46, {sW}\ns_add_u32 s46, s46, {4*(s-10)}\ns_cmp_ge_u32 s46, 20\ns_cselect_b32 s47, 20, 0\ns_sub_u32 s46, s46, s47')
        if R: out.append(f's_mul_i32 s46, s46, 6144\ns_add_u32 {sRK}, s46, {sKVB}')
        else: out.append(f's_add_u32 {sRK}, {sL6}, {sKVB}\ns_add_u32 {sRK}, {sRK}, {4*(s-10)*6144}')
        for n in range(6):
            pre=''
            if n==0: pre=f's_add_u32 m0, {sL6}, {SB}\n'
            if n==4: pre=f's_add_u32 m0, {sL6}, {SB+4096}\ns_add_u32 {sRK}, {sRK}, 4096\n'
            out.append(pre+f'buffer_load_dwordx4 v{LIN(0)}, {sWS}, {sRK} offen offset:{1024*(n%4)} sc1 lds ;#st{s}')
    else:
        if s<17:
            if R: out.append(f's_add_u32 s46, {sROT}, {sW}\ns_add_u32 s46, s46, {4*(s-15)}\ns_cmp_ge_u32 s46, 10\ns_cselect_b32 s47, 10, 0\ns_sub_u32 s46, s46, s47\ns_lshl_b32 s46, s46, 12')
            else: out.append(f's_add_u32 s46, {sLX}, {4*(s-15)*4096}')
            out.append(f's_add_u32 {sRK}, s46, {sQB}\ns_add_u32 m0, {sLX}, {SB}')
            cnt=4
        else:
            if R: out.append(f's_lshl_b32 s46, {sROT}, 1\ns_add_u32 s46, s46, {sW}\ns_add_u32 s46, s46, 16\ns_cmp_ge_u32 s46, 20\ns_cselect_b32 s47, 20, 0\ns_sub_u32 s46, s46, s47')
            else: out.append(f's_add_u32 s46, {sW}, 16')
            out.append(f's_lshl_b32 s46, s46, 11\ns_add_u32 {sRK}, s46, {sQB}\ns_lshl_b32 s46, {sW}, 11\ns_add_u32 m0, s46, {SB}')
            cnt=2
        for n in range(cnt):
            out.append(f'buffer_load_dwordx4 v{LIN(0)}, {sWS}, {sRK} offen offset:{1024*n} sc1 lds ;#st{s}')
    return out
def prologue_work(p):
    a,b,c,d,e,f_=T,T+1,T+2,T+3,U+92,U+93
    D1,D2=U+48,U+64
    Y=U
    for i in range(10):
        p(f'v_lshlrev_b32 v{Y+2*i}, 16, v{PX+i}\nv_and_b32 v{Y+2*i+1}, 0xffff0000, v{PX+i}')
        if i==0:
            p(f'''s_cmp_eq_u32 s58, 0
            s_cbranch_scc0 L_nz2
            v_mov_b32 v{a}, 0
            v_mov_b32 v{b}, 1
            buffer_store_dword v{b}, v{a}, {sDBG}, 0 offen sc1 ;#nocount
            L_nz2:''')
    def red32(r,t):
        for k in (8,4,2,1): p(f'v_add_f32_dpp v{r}, v{r}, v{r} row_ror:{k} row_mask:0xf bank_mask:0xf')
        p(f'v_mov_b32 v{t}, v{r}\nv_permlane16_swap_b32 v{r}, v{t}\nv_add_f32 v{r}, v{r}, v{t}')
    p(f'v_add_f32 v{a}, v{Y}, v{Y+1}\nv_add_f32 v{b}, v{Y+2}, v{Y+3}')
    for i in range(4,20,2): p(f'v_add_f32 v{a}, v{a}, v{Y+i}\nv_add_f32 v{b}, v{b}, v{Y+i+1}')
    p(f'v_add_f32 v{a}, v{a}, v{b}')
    red32(a,b)
    p(f'v_mul_f32 v{a}, {f32(-1.0/640)}, v{a}')
    for i in range(20): p(f'v_add_f32 v{Y+i}, v{Y+i}, v{a}')
    p(f'v_mul_f32 v{b}, v{Y}, v{Y}\nv_mul_f32 v{c}, v{Y+1}, v{Y+1}')
    for i in range(2,20,2): p(f'v_fmac_f32 v{b}, v{Y+i}, v{Y+i}\nv_fmac_f32 v{c}, v{Y+i+1}, v{Y+i+1}')
    p(f'v_add_f32 v{b}, v{b}, v{c}')
    red32(b,c)
    p('@vmwait pl\ns_barrier')
    F0=U+24
    for n in range(3):
        F=F0+8*n
        p(f'''ds_read_b64_tr_b16 {vr(F,2)}, v{aQ if n<2 else aQ2} offset:{4096*n} ;#pro
        ds_read_b64_tr_b16 {vr(F+2,2)}, v{aQ if n<2 else aQ2} offset:{4096*n+1024} ;#pro
        ds_read_b64_tr_b16 {vr(F+4,2)}, v{aW if n<2 else aW2} offset:{4096*n} ;#pro
        ds_read_b64_tr_b16 {vr(F+6,2)}, v{aW if n<2 else aW2} offset:{4096*n+1024} ;#pro''')
    R=U+20
    p(f'''v_mov_b32 v{c}, {f32(1e-5)}
    v_fmac_f32 v{c}, {f32(1.0/640)}, v{b}
    v_rsq_f32 v{e}, v{c}
    v_lshrrev_b32 v{d}, 5, v0
    v_add_u32 v{d}, s54, v{d}
    v_lshlrev_b32 v{U+94}, 4, v{d}
    v_lshlrev_b32 v{U+95}, 2, v{d}
    v_mul_f32 v{b}, v{c}, v{e}
    v_cvt_pk_bf16_f32 v{R+1}, v{a}, v{b}
    v_mov_b32 v{R+3}, v{e}
    v_lshlrev_b32 v{c}, 16, v{R+1}
    v_and_b32 v{d}, 0xffff0000, v{R+1}
    v_sub_f32 v{c}, v{a}, v{c}
    v_sub_f32 v{d}, v{b}, v{d}
    v_cvt_pk_bf16_f32 v{R}, v{a}, v{c}
    v_mov_b32 v{f_}, 0
    v_cvt_pk_bf16_f32 v{R+2}, v{d}, v{f_}
    s_cmp_eq_u32 {sW}, 2
    s_cselect_b32 s56, 0xff000000, 0
    s_mov_b32 s57, s56
    s_lshl_b32 s48, {sW}, 10
    s_cmp_eq_u32 {sW}, 3
    s_cselect_b32 s48, {WQ_QOFF}, s48
    s_add_u32 s55, s48, {sKVB}
    s_mov_b32 s48, {WS_ST}
    s_mov_b32 s49, {WS_RS}''')
    for n in range(3):
        F=F0+8*n
        for i in range(4): p(f'v_cndmask_b32 v{F+i}, v{F+i}, v{f_}, s[56:57]')
        A=A1 if n<2 else A2o
        if n==2: p('s_mov_b32 exec_hi, 0')
        p(f'buffer_store_dwordx4 {vr(F)}, v{dq[n]}, {sWS}, s55 offen sc1 ;#pst')
        if n==2: p('s_mov_b32 exec_hi, -1')
        p(f'{M32} {vr(D1,16)}, {vr(A)}, {vr(F)}, {"0" if n==0 else vr(D1,16)}')
        p(f'{M32} {vr(D2,16)}, {vr(A)}, {vr(F+4)}, {"0" if n==0 else vr(D2,16)}')
    p(f'''s_mov_b32 exec_lo, 1
    s_mov_b32 exec_hi, 1
    buffer_store_dwordx4 {vr(R)}, v{U+94}, {sWS}, s48 offen sc1 ;#pst
    buffer_store_dword v{R+3}, v{U+95}, {sWS}, s49 offen sc1 ;#pst
    s_mov_b64 exec, -1
    v_mov_b32 v{U}, -1
    v_mov_b32 v{U+1}, -1
    v_mov_b32 v{U+2}, -1
    v_mov_b32 v{U+3}, -1
    buffer_store_dwordx4 {vr(U)}, v{vKC}, {sWS}, {sKVP} offen sc1 ;#pst
    s_lshl_b32 s45, {sJ}, 4
    s_add_u32 s45, s45, {sTI}
    s_mul_i32 s45, s45, {CS_P}
    s_add_u32 s45, s45, {WS_CS}
    s_lshl_b32 s46, {sW}, 7
    s_add_u32 s46, s46, s45
    s_add_u32 s46, s46, 384
    s_min_u32 s47, {sW}, 2
    s_lshl_b32 s47, s47, 7
    s_add_u32 s47, s47, s45
    v_lshlrev_b32 v{a}, 2, v0
    v_mov_b32 v{b}, 0
    s_mov_b32 exec_hi, 0
    buffer_store_dword v{D1}, v{a}, {sWS}, s46 offen sc1 ;#pst
    buffer_store_dword v{D2}, v{a}, {sWS}, s47 offen sc1 ;#pst
    s_mov_b32 exec_hi, -1
    buffer_load_dword v{TMP+23}, v{b}, {sDBG}, 0 offen sc1 ;#dbg''')
def addr_wc(st):
    a,b,c,d,e,f_=TMP,TMP+1,TMP+2,TMP+3,TMP+4,TMP+5
    vC=UD+4
    st.add(f'''v_lshrrev_b32 v{a}, 4, v0
    v_and_b32 v{b}, 15, v0
    v_min_u32 v{c}, 9, v{b}
    v_mul_u32_u24 v{vC}, 0x500, v{a}
    v_lshl_add_u32 v{vC}, v{c}, 4, v{vC}
    s_lshl_b32 s48, {sW}, 2
    v_add_u32 v{a}, s48, v{a}
    v_bfe_u32 v{e}, v0, 2, 2
    v_and_b32 v{f_}, 3, v0
    v_lshlrev_b32 v{f_}, 3, v{f_}
    v_lshl_add_u32 v{e}, v{e}, 8, v{f_}
    v_lshlrev_b32 v{f_}, 4, v{b}
    s_mul_i32 s49, {sTT}, 6
    s_lshr_b32 s50, {sTT}, 1
    s_mul_i32 s50, s50, 5
    s_add_u32 s50, s50, 192
    s_movk_i32 s51, 5120''')
    for n in range(4):
        wo=n>=2
        st.add(f'''v_add_u32 v{b}, {16*(n&1)}, v{a}
        v_min_u32 v{b}, {24 if wo else 29}, v{b}
        v_mul_u32_u24 v{c}, 52, v{b}
        v_lshrrev_b32 v{c}, 8, v{c}
        v_mul_u32_u24 v{d}, 5, v{c}
        v_sub_u32 v{b}, v{b}, v{d}
        v_lshrrev_b32 v{d}, 1, v{c}
        v_lshlrev_b32 v{UA+n}, 12, v{d}
        v_and_b32 v{d}, 1, v{c}
        v_lshl_add_u32 v{UA+n}, v{d}, 10, v{UA+n}
        v_lshl_add_u32 v{UA+n}, v{b}, 5, v{UA+n}
        v_add_u32 v{UA+n}, v{e}, v{UA+n}
        v_add_u32 v{c}, {'s50' if wo else 's49'}, v{c}
        v_lshrrev_b32 v{d}, 2, v{c}
        v_and_b32 v{c}, 3, v{c}
        v_lshl_add_u32 v{c}, v{c}, 8, v{f_}
        v_lshl_add_u32 v{c}, v{b}, 10, v{c}
        v_mad_u32_u24 v{UD+n}, v{d}, s51, v{c}''')
def wc_loads():
    vC=UD+4; out=[]
    out.append(f's_mul_i32 s46, {sTT}, 48\ns_lshl_b32 s47, {sW}, 2\ns_add_u32 s46, s46, s47\ns_mul_i32 s46, s46, 1280\ns_mul_i32 s47, {sC}, 160\ns_add_u32 {sRW}, s46, s47')
    out.append(f's_lshl_b32 {sRX}, {sW}, 10')
    for n in range(3):
        out.append(f's_add_u32 m0, {sRX}, {L_WC+4096*n}\ns_add_u32 s45, {sRW}, {16*1280*n}\nbuffer_load_dwordx4 v{vC}, {sW2}, s45 offen lds ;#wcl')
    out.append(f's_lshr_b32 s46, {sTT}, 1\ns_mul_i32 s46, s46, {40*1280}\ns_mul_i32 s47, {sC}, 160\ns_add_u32 {sRW}, s46, s47')
    for n in range(3,6):
        if n==3: a=f's_mul_i32 s46, {sW}, {4*1280}'
        elif n==4: a=f's_mul_i32 s46, {sW}, {4*1280}\ns_add_u32 s46, s46, {20*1280}'
        else: a=f's_lshr_b32 s46, {sW}, 1\ns_mul_i32 s46, s46, {20*1280}\ns_add_u32 s46, s46, {16*1280}'
        out.append(f'{a}\ns_add_u32 s45, {sRW}, s46\ns_add_u32 m0, {sRX}, {L_WC+4096*n}\nbuffer_load_dwordx4 v{vC}, {sWO}, s45 offen lds ;#wcl')
    return out
def wc_work(p):
    p('@vmwait wcl\ns_barrier')
    for n in range(4):
        F=WCD+4*n; o=L_WC+(48*256 if n>=2 else 0)
        p(f'ds_read_b64_tr_b16 {vr(F,2)}, v{UA+n} offset:{o}\nds_read_b64_tr_b16 {vr(F+2,2)}, v{UA+n} offset:{o+2048}')
    p(f's_mul_i32 s48, {sC}, {WC_C}\ns_add_u32 s48, s48, {WS_WC}')
    return [f'buffer_store_dwordx4 {vr(WCD+4*n)}, v{UD+n}, {sWS}, s48 offen sc1 ;#wcst' for n in range(4)]
def addr_kv(st):
    a,b,c,d,e=TMP,TMP+1,TMP+2,TMP+3,TMP+4
    st.add(f'''v_and_b32 v{a}, 31, v0
    v_lshrrev_b32 v{b}, 5, v0
    s_mul_i32 {sL6}, {sW}, 6144
    s_lshl_b32 s48, {sTI}, 2
    s_add_u32 s48, s48, {sW}
    s_lshl_b32 s48, s48, 1
    s_mul_i32 s48, s48, {X_T}
    s_add_u32 s48, s48, {WS_X}
    s_mul_i32 s49, {sJ}, 3072
    s_add_u32 {sACT}, s48, s49
    s_mul_i32 s49, {sJ}, 1280
    s_add_u32 s48, s48, {192*256}
    s_add_u32 {sOST}, s48, s49
    s_mov_b32 {sC1}, {f32(1.000001)}
    s_mov_b32 {sEPS}, {f32(1e-6)}
    s_mov_b32 s74, 0xff00ff00
    s_mov_b32 s75, 0xff00ff00
    v_bfe_u32 v{c}, v0, 4, 1
    v_mul_u32_u24 v{c}, {X_T}, v{c}
    v_lshl_add_u32 v{c}, v{b}, 8, v{c}
    v_and_b32 v{d}, 15, v0
    v_lshl_add_u32 v{ACTO}, v{d}, 4, v{c}
    s_add_u32 s48, {sL6}, {L_EX}
    v_add_u32 v{EXW}, s48, v{LIN(0)}
    s_lshr_b32 s49, {sW}, 1
    s_lshl_b32 s49, s49, 12
    s_add_u32 s49, s49, {L_EX}
    v_add_u32 v{EXA}, s49, v{LIN(0)}
    s_and_b32 s49, {sW}, 1
    s_lshl_b32 s49, s49, 11
    s_add_u32 s49, s49, {L_EX+2048}
    v_add_u32 v{EXB}, s49, v{LIN(0)}
    v_bfe_u32 v{c}, v0, 2, 2
    v_and_b32 v{d}, 1, v0
    v_lshl_add_u32 v{c}, v{d}, 5, v{c}
    v_lshlrev_b32 v{c}, 4, v{c}
    v_bfe_u32 v{d}, v0, 1, 1
    v_lshl_add_u32 v{c}, v{d}, 3, v{c}
    v_bfe_u32 v{d}, v0, 4, 1
    v_lshl_add_u32 v{c}, v{d}, 10, v{c}
    s_add_u32 s48, s48, {4096+256}
    v_add_u32 v{EXT}, s48, v{c}''')
    eg,vb,zz=TMP+5,TMP+6,TMP+7
    st.add(f'''s_and_b32 s56, {sW}, 1
    s_mul_i32 s57, s56, 24
    v_add_u32 v{eg}, s57, v{a}''')
    st.add(f'''s_cmp_eq_u32 s56, 1
    s_cselect_b32 s48, 0x0100ff00, -1
    s_cselect_b32 s50, 0x01000000, 0''',glue=True)
    st.add(f'''s_mov_b32 s49, s48
    s_mov_b32 s51, s50
    s_lshr_b32 s56, {sW}, 1
    v_cmp_le_u32 s[52:53], 20, v{eg}
    v_mov_b32 v{zz}, {sOOB}
    v_mov_b32 v{vb}, 20''')
    for q in range(4):
        st.add(f'''v_lshlrev_b32 v{c}, 2, v{b}
        s_lshl_b32 s57, s56, 5
        s_add_u32 s57, s57, {8*q}
        v_add_u32 v{c}, s57, v{c}
        v_cmp_le_u32 vcc, 20, v{c}
        v_cndmask_b32 v{d}, 0, v{vb}, vcc
        v_sub_u32 v{c}, v{c}, v{d}
        v_sub_u32 v{e}, v{eg}, v{d}
        v_cndmask_b32 v{e}, v{e}, v{vb}, s[50:51]
        v_lshrrev_b32 v{d}, 2, v{d}
        v_mul_u32_u24 v{d}, 336, v{d}
        v_mul_u32_u24 v{e}, 80, v{e}
        v_lshl_add_u32 v{c}, v{c}, 2, v{d}
        v_add_u32 v{c}, v{c}, v{e}
        s_xnor_b64 s[54:55], vcc, s[52:53]
        s_or_b64 s[54:55], s[54:55], s[50:51]
        s_and_b64 s[54:55], s[54:55], s[48:49]''')
        if q>0: st.add(f's_cmp_eq_u32 s56, 0\ns_cselect_b64 s[54:55], s[54:55], 0',glue=True)
        st.add(f'v_cndmask_b32 v{KVO+q}, v{zz}, v{c}, s[54:55]')
def addr_p2(st):
    a,b=TMP,TMP+1
    st.add(f'''v_add_u32 v{WOF[1]}, 4096, v{LIN(0)}
    v_add_u32 v{XO[1]}, {X_T}, v{LIN(0)}
    v_add_u32 v{XO[2]}, {2*X_T}, v{LIN(0)}
    v_add_u32 v{XO[3]}, {3*X_T}, v{LIN(0)}
    s_mul_i32 s48, {sTT}, {4*X_T}
    s_add_u32 s48, s48, {WS_X}
    s_mul_i32 s49, {sC}, {WC_C}
    s_add_u32 s49, s49, {WS_WC}
    s_mul_i32 s50, {sW}, {12*1024}
    s_add_u32 {sXA}, s48, s50
    s_mul_i32 s50, {sW}, {12*5120}
    s_add_u32 {sWA}, s49, s50
    s_mul_i32 s50, {sW}, {5*1024}
    s_add_u32 s48, s48, {48*1024}
    s_add_u32 {sXO}, s48, s50
    s_mul_i32 s50, {sW}, {5*5120}
    s_add_u32 s49, s49, {48*5120}
    s_add_u32 {sWO2}, s49, s50
    s_lshl_b32 s48, {sTT}, 2
    s_add_u32 s48, s48, {sW}
    s_mul_i32 s48, s48, {16*1280}
    s_mul_i32 s49, {sC}, 160
    s_add_u32 {sRO}, s48, s49
    v_and_b32 v{a}, 15, v0
    v_mul_u32_u24 v{a}, 0x500, v{a}
    v_lshrrev_b32 v{b}, 4, v0
    v_lshl_add_u32 v{RESA}, v{b}, 3, v{a}''')
POLL1A=TMP+20; POLL1=TMP+21
def poll1_addr():
    a=POLL1A
    return f'''s_lshl_b32 s58, {sTI}, 7
    s_lshl_b32 s59, {sJ}, 7
    s_add_u32 s59, s59, 2048
    v_and_b32 v{a}, 15, v0
    v_lshlrev_b32 v{a}, 2, v{a}
    v_add_u32 v{POLL1}, s59, v{a}
    v_add_u32 v{a}, s58, v{a}
    s_mov_b32 s58, 0xffff0000
    s_mov_b32 s59, 0xffff0000
    v_cndmask_b32 v{a}, v{a}, v{POLL1}, s[58:59]'''
def addr_r(p):
    a,b,c,d=96,97,98,99
    tab=[0,2,1,3,4,10,9,11,12,13]; val=sum(v<<(4*i) for i,v in enumerate(tab))
    p(f'''s_lshl_b32 s48, {sW}, 6
    v_add_u32 v{a}, s48, v0
    v_min_u32 v{a}, 209, v{a}
    v_lshlrev_b32 v{RQ}, 4, v{a}
    v_mul_u32_u24 v{b}, 0x3334, v{a}
    v_lshrrev_b32 v{b}, 16, v{b}
    v_mul_u32_u24 v{c}, 5, v{b}
    v_sub_u32 v{c}, v{a}, v{c}
    v_cmp_le_u32 vcc, 21, v{b}
    v_cndmask_b32 v{d}, 0, 1, vcc
    v_mul_u32_u24 v{a}, 21, v{d}
    v_sub_u32 v{b}, v{b}, v{a}
    v_mul_u32_u24 v{d}, 5, v{d}
    v_add_u32 v{c}, v{c}, v{d}
    v_lshlrev_b32 v{c}, 2, v{c}
    s_mov_b32 s48, {val&0xffffffff}
    s_mov_b32 s49, {val>>32}
    v_lshrrev_b64 v[100:101], v{c}, s[48:49]
    v_and_b32 v{c}, 15, v100
    v_mul_u32_u24 v{b}, {A2P}, v{b}
    v_lshl_add_u32 v{b}, v{c}, 3, v{b}
    v_add_u32 v{RWA}, {L_A2}, v{b}
    v_and_b32 v{a}, 31, v0
    v_min_u32 v{a}, 20, v{a}
    v_mul_u32_u24 v{a}, {A2P}, v{a}
    v_lshrrev_b32 v{c}, 5, v0
    v_lshl_add_u32 v{a}, v{c}, 4, v{a}
    v_add_u32 v{RRA}, {L_A2}, v{a}
    s_lshl_b32 s48, {sW}, 10
    s_add_u32 s48, s48, {L_A2}
    v_add_u32 v{A2Z}, s48, v{LIN(0)}''')
    for i in range(4): p(f'v_mov_b32 v{NEG+i}, -1\nv_mov_b32 v{ZER+i}, 0')
CSA=TMP+2; BIA=TMP+20
def stats_issue():
    a,b=TMP,TMP+1
    t=f'''v_min_u32 v{b}, 55, v0
    v_lshlrev_b32 v{CSA}, 4, v{b}
    s_lshl_b32 s45, {sJ}, 2
    s_add_u32 s45, s45, {sW}
    s_mul_i32 s45, s45, {4*CS_P}
    s_add_u32 s45, s45, {WS_CS}
    '''
    for i in range(4): t+=f'buffer_load_dwordx4 {vr(TMP+4+4*i)}, v{CSA}, {sWS}, s45 offen offset:{CS_P*i} sc1\n'
    t+=f'''v_and_b32 v{a}, 31, v0
    v_lshlrev_b32 v{b}, 4, v{a}
    s_lshl_b32 s45, {sT0}, 4
    s_add_u32 s45, s45, {WS_ST}
    buffer_load_dwordx4 {vr(SX)}, v{b}, {sWS}, s45 offen sc1
    v_lshrrev_b32 v{b}, 5, v0
    v_lshlrev_b32 v{b}, 4, v{b}
    s_lshl_b32 s45, {sT0}, 2
    s_add_u32 s45, s45, {WS_RS}
    '''
    for q in range(4): t+=f'buffer_load_dwordx4 {vr(RSC+4*q)}, v{b}, {sWS}, s45 offen offset:{32*q} sc1\n'
    t+=f'v_lshlrev_b32 v{a}, 1, v{a}\ns_mul_i32 s45, {sJ}, 192\n'
    for k in range(3): t+=f'buffer_load_ushort v{BIA+k}, v{a}, {sB1}, s45 offen offset:{64*k}\n'
    return t
def stats_a(p):
    S=TMP+4
    for i in (1,3):
        for k in range(4): p(f'v_add_f32 v{S+4*(i-1)+k}, v{S+4*(i-1)+k}, v{S+4*i+k}')
    for k in range(4): p(f'v_add_f32 v{S+k}, v{S+k}, v{S+8+k}')
    p(f'''s_mul_i32 s48, {sW}, {CS_P}
    s_add_u32 s48, s48, {L_CS}
    v_add_u32 v{CSA}, s48, v{CSA}
    ds_write_b128 v{CSA}, {vr(S)}
    v_and_b32 v{TMP}, 31, v0
    v_lshlrev_b32 v{TMP}, 2, v{TMP}
    v_add_u32 v{TMP}, {L_CS}, v{TMP}
    v_mov_b32 v{RSTD}, v{SX+3}
    v_mov_b32 v{SX+3}, 0
    v_mul_f32 v{RL}, {f32(LOG2E)}, v{RSTD}
    v_mul_f32 v{M2R}, -2.0, v{RSTD}''')
    hm=TMP+1; z=TMP+2; one=TMP+3
    p(f'''v_cmp_gt_u32 vcc, 32, v0
    v_mov_b32 v{z}, 0
    v_cndmask_b32 v{hm}, 0, 1.0, vcc
    s_mov_b32 s48, 0xff000000
    s_mov_b32 s49, 0
    v_cndmask_b32 v{one}, 0, 1.0, s[48:49]''')
    for t in range(3): p(f'v_lshlrev_b32 v{BIA+t}, 16, v{BIA+t}\nv_mul_f32 v{BIA+t}, v{BIA+t}, v{hm}')
    for r in range(16): p(f'v_mul_f32 v{RLC+r}, {f32(LOG2E)}, v{RSC+r}')
def stats_b(st,tiles,g):
    hm=TMP+1; z=TMP+2; one=TMP+3
    for t in tiles:
        for w in range(4): st.add(f'ds_read_b32 v{SWB+4*t+w}, v{TMP} offset:{CS_P*w+128*t}',g)
    g+=3+len(tiles)
    for ops in ('v_add_f32 v{B}, v{B}, v{B1}\nv_add_f32 v{B2}, v{B2}, v{B3}','v_add_f32 v{B2}, v{B}, v{B2}','v_mul_f32 v{B2}, v{B2}, v{hm}',
                'v_cvt_pk_bf16_f32 v{B}, v{B2}, v{B2}','v_lshlrev_b32 v{B3}, 16, v{B}','v_sub_f32 v{B2}, v{B2}, v{B3}',
                'v_cvt_pk_bf16_f32 v{B1}, v{B2}, v{bias}\nv_mov_b32 v{B3}, 0','v_cvt_pk_bf16_f32 v{B2}, v{bias}, v{z}'):
        for t in tiles:
            B=SWB+4*t; bias=BIA+t if t<3 else (one if t==5 else z)
            st.add(ops.format(B=B,B1=B+1,B2=B+2,B3=B+3,hm=hm,bias=bias,z=z),g)
def mish_stream(st, gate):
    k=0
    for t in range(3):
        for rq in range(2):
            PK=TMP+16+4*(k&1); k+=1
            for g in range(2):
                A=ACW+16*t+8*rq+4*g; E=TMP+8*g; Uu=E+4
                for op in ('v_mul_f32 v{e}, v{a}, v{RL}','v_exp_f32 v{e}, v{e}','v_add_f32 v{u}, 2.0, v{e}','v_fma_f32 v{e}, v{e}, v{u}, 2.0',
                           'v_rcp_f32 v{e}, v{e}','v_fma_f32 v{e}, v{e}, v{M2R}, v{RSTD}','v_mul_f32 v{e}, v{a}, v{e}'):
                    for i in range(4): st.add(op.format(e=E+i,u=Uu+i,a=A+i,RL=RL,M2R=M2R,RSTD=RSTD),gate)
                st.add(f'v_cvt_pk_bf16_f32 v{PK+2*g}, v{E}, v{E+1}\nv_cvt_pk_bf16_f32 v{PK+2*g+1}, v{E+2}, v{E+3}',gate)
            st.add(f'buffer_store_dwordx4 {vr(PK)}, v{ACTO}, {sWS}, {sACT} offen offset:{(4*t+2*rq)*256} sc1 ;#act',gate)
def phi_ops(st, gate, A, rs, rl, E, Uu, dst):
    for i in range(4): st.add(f'v_mul_f32 v{E+i}, v{A+i}, v{rl(i)}',gate)
    for i in range(4): st.add(f'v_exp_f32 v{E+i}, v{E+i} clamp',gate)
    for i in range(4): st.add(f'v_fma_f32 v{Uu+i}, v{A+i}, v{rs(i)}, {sC1}',gate)
    for i in range(4): st.add(f'v_add_f32 v{E+i}, {sEPS}, v{E+i}',gate)
    for i in range(4): st.add(f'v_max_f32 v{E+i}, v{E+i}, v{Uu+i}',gate)
    st.add(f'v_cvt_pk_bf16_f32 v{dst}, v{E}, v{E+1}\nv_cvt_pk_bf16_f32 v{dst+1}, v{E+2}, v{E+3}',gate)
def kv_stream(st, gate):
    k=0
    for tile,AC in ((1,ACV),(0,ACK),(2,ACR)):
        for ks in range(2):
            PK=TMP+16+4*(k&1); k+=1
            for g in range(2):
                r0=8*ks+4*g; A=AC+r0; E=TMP+8*g; Uu=E+4
                if tile==0: phi_ops(st,gate,A,lambda i:RSC+r0+i,lambda i:RLC+r0+i,E,Uu,PK+2*g)
                elif tile==1:
                    for i in range(4): st.add(f'v_mul_f32 v{E+i}, v{A+i}, v{RSC+r0+i}',gate)
                    st.add(f'v_cvt_pk_bf16_f32 v{PK+2*g}, v{E}, v{E+1}\nv_cvt_pk_bf16_f32 v{PK+2*g+1}, v{E+2}, v{E+3}',gate)
                else:
                    for i in range(4): st.add(f'v_mul_f32 v{E+i}, v{A+i}, v{RLC+r0+i}',gate)
                    for i in range(4): st.add(f'v_exp_f32 v{E+i}, v{E+i} clamp',gate)
                    for i in range(4): st.add(f'v_mul_f32 v{A+i}, v{A+i}, v{RSC+r0+i}',gate)
                    for i in range(4): st.add(f'v_add_f32 v{E+i}, {sEPS}, v{E+i}',gate)
                    for i in range(4): st.add(f'v_add_f32 v{Uu+i}, {sC1}, v{A+i}',gate)
                    for i in range(4): st.add(f'v_max_f32 v{E+i}, v{E+i}, v{Uu+i}',gate)
                    for i in range(4): st.add(f'v_cndmask_b32 v{E+i}, v{E+i}, v{A+i}, {sMV}',gate)
                    st.add(f'v_cvt_pk_bf16_f32 v{PK+2*g}, v{E}, v{E+1}\nv_cvt_pk_bf16_f32 v{PK+2*g+1}, v{E+2}, v{E+3}',gate)
            st.add(f'ds_write_b128 v{EXW}, {vr(PK)} offset:{2048*tile+1024*ks} ;#ex',gate)
def w1_pass(p):
    mf=[]; reads=[]; fr=0
    for ks in range(40):
        s=ks//4; q=ks%4; sl=slot(s); g=grp(sl); o=(sl%2)*SLOT
        reads.append((f'ds_read_b128 {ar(4*ks)}, v{XR(g,q)} offset:{o} ;#rd{s}',s,len(mf)))
        for t in range(3):
            b=POOL+4*(fr%NP); fr+=1; off=o+16384+q*3072+64*t
            reads.append((f'ds_read_b64_tr_b16 {ar(b,2)}, v{W1R(g)} offset:{off} ;#rd{s}\nds_read_b64_tr_b16 {ar(b+2,2)}, v{W1R(g)} offset:{off+768} ;#rd{s}',s,len(mf)))
            D=vr(ACW+16*t,16)
            mf.append(f'{M32} {D}, {ar(b)}, {ar(4*ks)}, {"0" if ks==0 else D}')
    dma=Stream(); fil=Stream()
    addr_wc(fil); addr_kv(fil); addr_p2(fil)
    def mkopen(s):
        def f(m):
            flush(p,dma)
            if s==9: flush(p,fil)
            head=(f'@lgwait rd{s-1}\n' if s>0 else '@lgwait pro\n')+f'@vmwait st{s}\n'
            if s==OPT['sig']: head+='@vmwait dbg\n'
            head+='s_barrier\n'
            if s<=5:
                for t in dma_stage(s+4,'loads'): dma.add(t,glue=True)
            if s<5:
                for t in dma_stage(s+5,'pre'): dma.add(t,glue=True)
            if s==OPT['sig']:
                head+=f'v_readfirstlane_b32 s58, v{TMP+23}\n'
                head+=fallback('dbg',f'v_mov_b32 v{TMP+22}, 0\nbuffer_load_dword v{TMP+23}, v{TMP+22}, {sDBG}, 0 offen sc1\ns_waitcnt vmcnt(0)\nv_readfirstlane_b32 s58, v{TMP+23}','s_cmp_lg_u32 s58, 0')
                head+=f'\nbuffer_store_dword v{VAL}, v{SIG}, {sWS}, 0 offen sc1\n'+st_('sig1')
            if s==OPT['pp']:
                head+=poll1_addr()+f'\nbuffer_load_dword v{POLL1}, v{POLL1A}, {sWS}, 0 offen sc1 ;#poll1\n'
            if s==max(OPT['pp'],6):
                for t in wc_loads(): dma.add(t,glue=True)
            if s==9:
                head+=h1_check()
            return head
        return f
    opens={s:mkopen(s) for s in range(10)}
    for t in dma_stage(4,'pre'): p(t)
    run_pass(p,mf,reads,opens,[fil],pre=dma,depth=OPT['depth'],delay=OPT['delay'],maxrd=OPT['maxrd'])
    return fr
def h1_check():
    t='@vmwait poll1\n'+fallback('h1',f'buffer_load_dword v{POLL1}, v{POLL1A}, {sWS}, 0 offen sc1',
                                  f'v_cmp_ne_u32 s[58:59], 0, v{POLL1}\ns_nop 1\ns_cmp_eq_u64 s[58:59], -1')
    t+='\n'+st_('h1ok')+stats_issue()
    for s in (10,11,12): t+='\n'.join(dma_stage(s))+'\n'
    return t
def bubble(p):
    p(st_('w1done'))
    addr_r(p)
    for t in wc_work(p): p(t)
    stats_a(p)
def kvq_pass(p,fr):
    mf=[]; reads=[]; hooks={}
    dma=Stream(); scs=Stream(); st1=Stream()
    mc=OPT['mc']
    def rd(text,s): reads.append((text,s,len(mf)))
    for ks in range(40):
        s=10+ks//8; sl=slot(s); g=grp(sl); o=(sl%2)*SLOT
        for t,AC in enumerate((ACK,ACV,ACR)):
            if len(mf)==mc:
                hooks[mc-1]=lambda m:(flush(p,scs),'')[1]
                for tt in range(3):
                    D=vr(ACW+16*tt,16); mf.append(f'{M32} {D}, {vr(SWB+4*tt)}, {vr(SX)}, {D}')
            b=POOL+4*(fr%NP); fr+=1
            rd(f'ds_read_b128 {ar(b)}, v{LIN(g)} offset:{o+(3*(ks%8)+t)*1024} ;#rd{s}',s)
            D=vr(AC,16); mf.append(f'{M32} {D}, {ar(4*ks)}, {ar(b)}, {"0" if ks==0 else D}')
    def chk(m):
        assert len(st1.q)<=nleft, 'column-sum operands not ready'
        print('left in st1 at kv end',len(st1.q),'kv items',nkv,file=sys.stderr)
        return ''
    hooks[len(mf)-1]=chk
    for t,AC in ((1,ACV),(0,ACK),(2,ACR)):
        D=vr(AC,16); mf.append(f'{M32} {D}, {vr(SX)}, {vr(SWB+12+4*t)}, {D}')
    mf[-1]+='\n'+st_('kvdone')
    g_kv=len(mf)+1
    for ks in range(40):
        s=15+ks//16; sl=slot(s); g=grp(sl); o=(sl%2)*SLOT
        b=POOL+4*(fr%NP); fr+=1
        rd(f'ds_read_b128 {ar(b)}, v{LIN(g)} offset:{o+(ks%16)*1024} ;#rd{s}',s)
        D=vr(ACQ,16); mf.append(f'{M32} {D}, {ar(b)}, {ar(4*ks)}, {"0" if ks==0 else D}')
    D=vr(ACQ,16); mf.append(f'{M32} {D}, {vr(SWB+24)}, {vr(SX)}, {D}')
    def mkopen(s):
        def f(m):
            flush(p,dma)
            head=(f'@lgwait rd{s-1}\n' if s>10 else '@wait lg\n')+f'@vmwait st{s}\n'
            if s==13: head+='@vmwait wcst\n'
            head+='s_barrier\n'
            if s==10:
                head+=st_('kvstart')
                for x in (13,14):
                    for t in dma_stage(x): dma.add(t,glue=True)
                stats_b(scs,(0,1,2),0)
            elif s<=13:
                for t in dma_stage(s+4): dma.add(t,glue=True)
            if s==13:
                head+=f'''s_lshl_b32 s58, {sC}, 5
                s_add_u32 s58, s58, {sTT}
                s_lshl_b32 s58, s58, 2
                s_add_u32 s58, s58, 4096
                s_cmp_eq_u32 {sW}, 0
                s_cselect_b32 s58, s58, {sOOB}
                v_mov_b32 v{XD[0]}, {sOOB}
                v_writelane_b32 v{XD[0]}, s58, 0
                buffer_store_dword v{VAL}, v{XD[0]}, {sWS}, 0 offen sc1
                '''
            return head
        return f
    opens={s:mkopen(s) for s in range(10,18)}
    g=mc+4
    st1.add(f'buffer_store_dwordx4 {vr(NEG)}, v{ACTO}, {sWS}, {sOST} offen sc1 ;#act\nbuffer_store_dwordx4 {vr(NEG)}, v{ACTO}, {sWS}, {sOST} offen offset:512 sc1 ;#act',0)
    st1.add(f's_mov_b32 exec_hi, 0\nbuffer_store_dwordx4 {vr(NEG)}, v{ACTO}, {sWS}, {sOST} offen offset:1024 sc1 ;#act\ns_mov_b32 exec_hi, -1',0,glue=True)
    stats_b(st1,(3,4,5,6),mc-4); n0=len(st1.q)
    mish_stream(st1,g); n1=len(st1.q); kv_stream(st1,g_kv); nleft=len(st1.q)-n0; nkv=len(st1.q)-n1
    run_pass(p,mf,reads,opens,[scs,st1],pre=dma,depth=OPT['kdepth'],delay=OPT['delay'],maxrd=3,hooks=hooks)
CPA=XD[0]; CPV=XD[1]
def p1_tail(p):
    p('@wait lg\ns_barrier\n'+st_('exch'))
    for u in range(4):
        for ks in range(2):
            k=2*u+ks
            p(f'ds_read_b128 {ar(POOL+8*k)}, v{EXA} offset:{6144*u+1024*ks}\nds_read_b128 {ar(POOL+8*k+4)}, v{EXB} offset:{6144*u+1024*ks}')
    p(f'ds_read_b64_tr_b16 {vr(QP+8,2)}, v{EXT}\nds_read_b64_tr_b16 {vr(QP+10,2)}, v{EXT} offset:64')
    p(f'''s_lshl_b32 s58, {sC}, 7
    s_add_u32 s58, s58, 4096
    v_and_b32 v{CPA}, 31, v0
    v_lshl_add_u32 v{CPA}, v{CPA}, 2, s58
    buffer_load_dword v{CPV}, v{CPA}, {sWS}, 0 offen sc1 ;#cpoll
    ds_write_b128 v{A2Z}, {vr(ZER)}''')
    KD=ACR; D=vr(KD,16)
    st=Stream()
    for g in range(4): phi_ops(st,0,ACQ+4*g,lambda i:RSTD,lambda i:RL,TMP+8*(g&1),TMP+8*(g&1)+4,QP+2*g)
    mf=[f'{M32} {D}, {ar(POOL+8*k)}, {ar(POOL+8*k+4)}, {"0" if k==0 else D}' for k in range(8)]
    run_pass(p,mf,[],{},[st],drain=False)
    for _ in range(12):
        if st.q: p.extend(st.q.pop(0)[1])
    for q in range(4):
        p(f'v_min_u32 v{KD+4*q}, -2, v{KD+4*q}\nbuffer_store_dwordx4 {vr(KD+4*q)}, v{KVO+q}, {sWS}, {sKVP} offen sc1 ;#kvp')
    p(st_('kvst'))
    p('@vmwait cpoll\n'+fallback('c',f'buffer_load_dword v{CPV}, v{CPA}, {sWS}, 0 offen sc1',
                                  f'v_cmp_ne_u32 s[58:59], 0, v{CPV}\ns_nop 1\ns_cmp_eq_u64 s[58:59], -1'))
    p(f'''v_mov_b32 v{VAL}, 3
    @wait lg
    s_barrier
    buffer_store_dword v{VAL}, v{SIG}, {sWS}, 0 offen sc1''')
    return st
WS_=lambda k:(ar(20*k) if k<8 else None)
def wslot(k):
    tab={8:('v',100),9:('v',136),10:('a',0),11:('a',20),12:('a',40),13:('a',60),14:('a',80),15:('a',100),16:('a',120)}
    f,b=tab.get(k,('a',20*k))
    return lambda n:f'{f}[{b+4*n}:{b+4*n+3}]'
def xslot(k):
    tab={0:('a',160),1:('a',176),2:('a',192),3:('a',208),4:('a',224),5:('a',240),6:('v',164),7:('v',180),
         8:('v',120),9:('v',196),10:('v',212),11:('a',160),12:('a',176),13:('a',192),14:('a',208),15:('a',224),16:('a',240)}
    f,b=tab[k]
    return lambda t:f'{f}[{b+4*t}:{b+4*t+3}]'
def wload(k):
    base,kk=(sWA,k) if k<12 else (sWO2,k-12)
    w=wslot(k); out=[]
    for n in range(5):
        pre=(f's_add_u32 s45, {base}, {kk*5120}\n' if n==0 else '')
        out.append(pre+f'buffer_load_dwordx4 {w(n)}, v{WOF[n//4]}, {sWS}, s45 offen offset:{1024*(n%4)} sc1')
    return out
def xload(k,tag=''):
    base,kk=(sXA,k) if k<12 else (sXO,k-12)
    x=xslot(k); out=[]
    for t in range(4):
        pre=(f's_add_u32 s46, {base}, {(kk//4)*4096}\n' if t==0 else '')
        out.append(pre+f'buffer_load_dwordx4 {x(t)}, v{XO[t]}, {sWS}, s46 offen offset:{1024*(kk%4)} sc1{tag}')
    return out
def r_loads():
    t=f's_mul_i32 s47, {sJ}, {16*KV_P}\ns_add_u32 s47, s47, {WS_KV}\n'
    for i in range(16):
        t+=f'buffer_load_dwordx4 {vr(RB+4*i)}, v{RQ}, {sWS}, s47 offen offset:{KV_P*(i&1)} sc1 ;#rl\n'
        if i&1 and i<15: t+=f's_add_u32 s47, s47, {2*KV_P}\n'
    return t
def r_test():
    a=TMP
    t=f'v_max3_u32 v{a}, v{RB}, v{RB+4}, v{RB+8}\n'
    for i in range(3,15,2): t+=f'v_max3_u32 v{a}, v{a}, v{RB+4*i}, v{RB+4*i+4}\n'
    t+=f'v_max_u32 v{a}, v{a}, v{RB+60}\nv_cmp_eq_u32 s[58:59], -1, v{a}\ns_nop 1\ns_cmp_eq_u64 s[58:59], 0'
    return t
def p2_front(p,st):
    for k in range(OPT['wpre']):
        for t in wload(k):
            p(t)
            for _ in range(2):
                if st.q: p.extend(st.q.pop(0)[1])
    flush(p,st)
    p(f'''s_lshr_b32 s47, {sTT}, 1
    s_lshl_b32 s47, s47, 7
    s_load_dwordx16 s[48:63], s[32:33], s47
    s_waitcnt lgkmcnt(0)''')
    t=''
    for i in range(50,64,2): t+=f's_and_b64 s[48:49], s[48:49], s[{i}:{i+1}]\n'
    t+='s_and_b32 s48, s48, s49\ns_bitcmp1_b32 s48, 1'
    fallbacks.append(f'''L_fb_h2:
    s_mov_b32 s3, 0
    v_and_b32 v{CPA}, 15, v0
    v_lshl_add_u32 v{CPA}, v{CPA}, 2, s47
    L_fbl_h2:
    buffer_load_dword v{CPV}, v{CPA}, {sWS}, 0 offen sc1
    s_waitcnt vmcnt(0)
    v_cmp_eq_u32 s[58:59], 3, v{CPV}
    s_nop 1
    s_cmp_eq_u64 s[58:59], -1
    s_cbranch_scc1 L_ok_h2
    s_add_u32 s3, s3, 1
    s_cmp_lt_u32 s3, {BOUND}
    s_cbranch_scc1 L_fbl_h2
    s_branch L_ok_h2''')
    p(t+'\ns_cbranch_scc0 L_fb_h2\nL_ok_h2:\n'+st_('h2ok'))
    p(r_loads())
    for k in range(OPT['wpre'],8):
        for t in wload(k): p(t)
    for k in range(8):
        for t in xload(k): p(t)
def r_work(p):
    B=RB
    p('@vmwait rl\n'+fallback('r',r_loads(),r_test())+'\n'+st_('rok'))
    n=16
    while n>1:
        n//=2
        for i in range(n):
            for k in range(4): p(f'v_add_f32 v{B+4*i+k}, v{B+4*i+k}, v{B+4*(i+n)+k}')
    p(f'''v_cvt_pk_bf16_f32 v{B+4}, v{B}, v{B+1}
    v_cvt_pk_bf16_f32 v{B+5}, v{B+2}, v{B+3}
    ds_write_b64 v{RWA}, {vr(B+4,2)}
    @wait lg
    s_barrier''')
    F=B+8; DA=B+24; DB=B+40
    for f in range(4): p(f'ds_read_b128 {vr(F+4*f)}, v{RRA} offset:{32*f}')
    p(f'''{M32} {vr(DA,16)}, {vr(F)}, {vr(QP)}, 0
    {M32} {vr(DB,16)}, {vr(F+8)}, {vr(QP+4)}, 0
    {M32} {vr(DA,16)}, {vr(F+4)}, {vr(QP+4)}, {vr(DA,16)}
    {M32} {vr(DB,16)}, {vr(F+12)}, {vr(QP+8)}, {vr(DB,16)}''')
    for n in range(5): p(f'buffer_load_dwordx2 {vr(RES+2*n,2)}, v{RESA}, {sX}, {sRO} offen offset:{32*n}')
    for D in (DA,DB):
        p(f'v_add_f32 v{D+12}, {sEPS}, v{D+12}\nv_rcp_f32 v{D+12}, v{D+12}')
    for k,D in enumerate((DA,DB)):
        for r in range(12): p(f'v_mul_f32 v{D+r}, v{D+r}, v{D+12}')
        for i in range(4): p(f'v_cvt_pk_bf16_f32 v{F+4*k+i}, v{D+2*i}, v{D+2*i+1}')
        for i in range(2): p(f'v_cvt_pk_bf16_f32 v{F+8+2*k+i}, v{D+8+2*i}, v{D+9+2*i}')
        p(f'v_min_u32 v{F+4*k}, -2, v{F+4*k}')
        p(f'buffer_store_dwordx4 {vr(F+4*k)}, v{ACTO}, {sWS}, {sOST} offen offset:{512*k} sc1 ;#o')
    p(f'''v_min_u32 v{F+8}, -2, v{F+8}
    s_mov_b32 exec_hi, 0
    buffer_store_dwordx4 {vr(F+8)}, v{ACTO}, {sWS}, {sOST} offen offset:1024 sc1 ;#o
    s_mov_b32 exec_hi, -1''')
    p(st_('rdone'))
def o_test():
    a=TMP+0; t=''
    regs=[]
    first=True
    E=100
    for k in range(12,17):
        x=xslot(k)
        for tt in range(4):
            b=int(x(tt).split('[')[1].split(':')[0])
            t+=f'v_accvgpr_read_b32 v{E+len(regs)}, a{b}\n'; regs.append(E+len(regs))
    t+=f'v_max3_u32 v{E}, v{E}, v{E+1}, v{E+2}\n'
    for i in range(3,19,2): t+=f'v_max3_u32 v{E}, v{E}, v{E+i}, v{E+i+1}\n'
    t+=f'v_max_u32 v{E}, v{E}, v{E+19}\nv_cmp_eq_u32 s[58:59], -1, v{E}\ns_nop 1\ns_cmp_eq_u64 s[58:59], 0'
    return t
def p2_main(p):
    for t in wload(8)+xload(8)+wload(9)+xload(9)+xload(10): p(t)
    st=Stream()
    def mfs(k):
        w=wslot(k); x=xslot(k)
        return [f'{M16} {vr(ACC+4*(4*n+t))}, {w(n)}, {x(t)}, {"0" if k==0 else vr(ACC+4*(4*n+t))}' for t in range(4) for n in range(5)]
    mf=[]
    after={0:wload(10)+xload(11),1:wload(11),2:wload(12),3:wload(13),4:wload(14),5:wload(15),6:wload(16)}
    ol=[t for k in range(12,17) for t in xload(k,' ;#ol')]
    after[OPT['go']]=after.get(OPT['go'],[])+ol
    for k in range(12):
        mf+=mfs(k)
        for t in after.get(k,[]): st.add(t,len(mf)-1,glue=True)
    run_pass(p,mf,[],{},[st],slots=2,vec=8)
    p(st_('actdone'))
    p('@vmwait ol\n'+fallback('o','\n'.join(ol).replace(' ;#ol',''),o_test())+'\n'+st_('ook'))
    for k in range(12,17): p('\n'.join(mfs(k)))
def p2_tail(p):
    a=196; S=100
    for t in range(4):
        p(f'''s_sub_u32 s45, {sW}, {t+1}
        s_and_b32 s45, s45, 3
        s_mul_i32 s45, s45, 5120
        s_add_u32 s45, s45, {t*4*5120}
        v_add_u32 v{a+t}, s45, v{LIN(0)}''')
    p(f'''s_mul_i32 s45, {sW}, {4*5120}
    v_add_u32 v{a+4}, s45, v{LIN(0)}''')
    p(st_('p2done'))
    for t in range(4):
        for n in range(5): p(f'ds_write_b128 v{a+t}, {vr(ACC+4*(4*n+t))} offset:{1024*n}')
    p('@wait lg\ns_barrier')
    for n in range(5):
        for u in range(4): p(f'ds_read_b128 {vr(S+20*u+4*n)}, v{a+4} offset:{5120*u+1024*n}')
    for n in range(5):
        R=S+4*n
        for k in range(2):
            p(f'v_lshlrev_b32 v{ACC+4*n+2*k}, 16, v{RES+2*n+k}\nv_and_b32 v{ACC+4*n+1+2*k}, 0xffff0000, v{RES+2*n+k}')
        for k in range(4):
            p(f'v_add_f32 v{R+k}, v{R+k}, v{R+20+k}\nv_add_f32 v{R+40+k}, v{R+40+k}, v{R+60+k}')
        for k in range(4): p(f'v_add_f32 v{R+k}, v{R+k}, v{R+40+k}')
        for k in range(4): p(f'v_add_f32 v{R+k}, v{R+k}, v{ACC+4*n+k}')
        p(f'''v_cvt_pk_bf16_f32 v{R}, v{R}, v{R+1}
        v_cvt_pk_bf16_f32 v{R+1}, v{R+2}, v{R+3}
        buffer_store_dwordx2 {vr(R,2)}, v{RESA}, {sOUT}, {sRO} offen offset:{32*n}''')
HDR=open('parallel_sum__linear_attn_block__dense_activation_mish__prompt.s.ref').read().split('; Override')[0]
def build(prof=False,lst=False):
    PROF['on']=prof; PROF['n']=0; PROF['names']=[]; del fallbacks[:]
    p=Prog(); p(st_('start')); startup(p)
    for s in range(4):
        for t in dma_stage(s): p(t)
    addr_p1lds(p); p(st_('issued'))
    prologue_work(p); p(st_('pst'))
    fr=w1_pass(p); bubble(p); kvq_pass(p,fr)
    st=p1_tail(p); p2_front(p,st); r_work(p); p2_main(p); p2_tail(p)
    p(st_('tail'))
    if prof: p('@wait vm'); p(st_('drained')); prof_flush(p,0)
    p('s_endpgm')
    lines,stats=finalize(p.items); print(len(lines),stats,file=sys.stderr)
    q=Prog()
    fb='\n'.join(fallbacks)
    lines+=['.p2align 6']
    for ln in fb.split('\n'):
        ln=ln.strip()
        if not ln: continue
        lines.append(ln)
    lines+=['L_end:','s_endpgm']
    name='k0_kernel' if lst else KN
    txt=HDR
    txt+=(f'; @launch kernel={name} grid=(256,1,1) block=(256,1,1) lds={LDS_BYTES}\n' if lst else f'; @launch grid=(256,1,1) block=(256,1,1) lds={LDS_BYTES}\n')
    txt+='.amdgcn_target "amdgcn-amd-amdhsa--gfx950"\n.text\n'+kernel_text(name,lines)
    txt+='.section .rodata,"a"\n.p2align 6\n'+descriptor(name)
    return txt
if __name__=='__main__':
    out=sys.argv[1]; prof=False
    for a in sys.argv[2:]:
        k,v=a.split('=')
        OPT[k]=v if k=='stamps' else int(v)
    prof=bool(OPT['stamps'])
    open(out,'w').write(build(prof,lst=bool(OPT.get('lst',0))))
    if prof: json.dump(PROF['all'],open(out+'.json','w'))
```

```python
import sys, json
from common import *
import common
from sched2 import *
OPT=dict(rot=1, sig=3, pp=7, depth=9, delay=3, maxrd=4, mc=18, kdepth=9, go=7, stamps='', wpre=8, xtest=0, osc='', spin=0, amp='')
XR=lambda g,s:1+4*g+s
W1R=lambda g:13+g
ACW=16; ACK=64; ACV=80; ACR=96; ACQ=112
SX=128; RSTD=132; RL=133; M2R=134; RSC=136; RLC=152; SWB=168; TMP=196; QP=220
LIN=lambda g:232+g
XD=(235,236); XD4=(96,97,98,99); WD=(237,238,239); ACTO=240; KVO=241; EXW=245; EXA=246; EXB=247; EXT=248
WOF=(232,249); XO=(232,250,251,252); RESA=253; SIG=254; VAL=255
NEG=2; ZER=6; A2Z=10; RQ=12; RWA=13; RRA=14
UA=64; UD=68; WCD=80
POOL=160; NP=24
ACC=16; RES=2; RB=100
sXB='s60'; sLX='s61'; sW1B='s62'; sLW='s63'; sKVB='s64'; sL6='s65'; sQB='s66'; sOST='s67'; sACT='s68'; sC1='s69'; sEPS='s70'
sT0='s71'; sKVP='s72'; sROT='s73'; sMV='s[74:75]'; sRX='s76'; sRW='s77'; sRK='s78'
sXA='s79'; sWA='s80'; sXO='s81'; sWO2='s82'; sRO='s83'
sOOB='0x40000000'
def slot(s): return s%NSLOT if s<10 else (s+1)%NSLOT
grp=lambda sl:sl//2
L_WC=0; L_EX=4*SLOT; L_A2=3*SLOT; A2P=144; L_CS=L_MISC
BOUND=200000
fallbacks=[]
def st_(name):
    if OPT['spin']:
        if name=='start': return 's_memrealtime s[84:85]\n'
        if name==OPT['amp']: return 's_memrealtime s[90:91]\n'
        return ''
    return stamp_text(name) if name in OPT['stamps'].split(',') else ''
def fallback(name, body, test):
    fallbacks.append(f'''L_fb_{name}:
    s_mov_b32 s3, 0
    L_fbl_{name}:
    {body}
    s_waitcnt vmcnt(0)
    {test}
    s_cbranch_scc1 L_ok_{name}
    s_add_u32 s3, s3, 1
    s_cmp_lt_u32 s3, {BOUND}
    s_cbranch_scc1 L_fbl_{name}
    s_branch L_ok_{name}''')
    return f'{test}\ns_cbranch_scc0 L_fb_{name}\nL_ok_{name}:'
T=200; U=16
vQ,vW1,vS,vS2=T+4,T+5,T+7,T+9
aQ,aQ2,aW,aW2=T+6,T+8,T+10,T+11
dq=[T+12,T+13,T+14]; vKC=T+15
PX=T+16
A1,A2o=U+84,U+88
def addr_first(p):
    a,b,c,d=T,T+1,T+2,T+3
    p(f'''v_lshrrev_b32 v{a}, 4, v0
    v_and_b32 v{b}, 15, v0
    v_min_u32 v{c}, 14, v{b}
    v_mul_u32_u24 v{d}, 52, v{c}
    v_lshrrev_b32 v{d}, 8, v{d}
    v_mul_u32_u24 v{vS}, 5, v{d}
    v_sub_u32 v{c}, v{c}, v{vS}
    v_add_u32 v{vS}, 1, v{d}
    v_cmp_gt_u32 vcc, 2, v{d}
    v_mul_u32_u24 v{vS}, 0x500, v{vS}
    v_cndmask_b32 v{vS}, 0, v{vS}, vcc
    v_lshl_add_u32 v{vS}, v{c}, 4, v{vS}
    v_mul_u32_u24 v{vQ}, 0xf00, v{a}
    v_add_u32 v{vQ}, v{vQ}, v{vS}
    v_min_u32 v{c}, 11, v{b}
    v_mul_u32_u24 v{vW1}, 0xc00, v{a}
    v_lshl_add_u32 v{vW1}, v{c}, 4, v{vW1}
    v_lshrrev_b32 v{a}, 5, v0
    v_and_b32 v{b}, 31, v0
    v_mul_u32_u24 v{vS}, 0x500, v{a}
    v_lshl_add_u32 v{vS2}, v{b}, 3, v{vS}
    v_lshl_add_u32 v{vS}, v{b}, 4, v{vS}''')
    p(f'''s_lshl_b32 s45, {sTI}, 4
    s_add_u32 s45, s45, {sJ}
    s_lshl_b32 s45, s45, 2
    s_add_u32 s45, s45, {sW}
    s_lshl_b32 s54, s45, 1
    s_mul_i32 s55, s54, 1280
    s_mul_i32 s45, {sTI}, 40
    s_lshl_b32 s46, {sW}, 2
    s_add_u32 s46, s46, s45
    s_mul_i32 s47, {sJ}, 80
    s_mul_i32 s48, s46, 3840
    s_add_u32 s48, s48, s47
    s_add_u32 s49, s48, {16*3840}
    s_mul_i32 s56, {sJ}, 192
    s_mul_i32 s51, s46, 3072
    s_add_u32 s51, s51, s56
    s_add_u32 s52, s51, {16*3072}
    s_min_u32 s57, {sW}, 1
    s_lshl_b32 s46, s57, 2
    s_add_u32 s46, s46, s45
    s_add_u32 s46, s46, 32
    s_mul_i32 s50, s46, 3840
    s_add_u32 s50, s50, s47
    s_mul_i32 s53, s46, 3072
    s_add_u32 s53, s53, s56
    s_lshl_b32 s57, s57, 10
    s_lshl_b32 s56, {sW}, 10''')
    c,d,e=T,T+1,T+2
    p(f'''v_lshrrev_b32 v{c}, 3, v0
    v_mul_u32_u24 v{c}, 0x500, v{c}
    v_and_b32 v{d}, 7, v0
    v_lshrrev_b32 v{e}, 4, v0
    v_xor_b32 v{d}, v{d}, v{e}
    v_lshl_add_u32 v{XD4[0]}, v{d}, 4, v{c}
    v_xor_b32 v{d}, 4, v{d}
    v_lshl_add_u32 v{XD4[1]}, v{d}, 4, v{c}
    v_add_u32 v{XD4[2]}, {16*1280-2048}, v{XD4[0]}
    v_add_u32 v{XD4[3]}, {24*1280-3072}, v{XD4[1]}
    v_add_u32 v{XD4[1]}, {8*1280-1024}, v{XD4[1]}''')
    for n in range(3):
        p(f'''v_add_u32 v{c}, {64*n}, v0
        v_mul_u32_u24 v{d}, 0xaab, v{c}
        v_lshrrev_b32 v{d}, 15, v{d}
        v_mul_u32_u24 v{e}, 12, v{d}
        v_sub_u32 v{c}, v{c}, v{e}
        v_mul_u32_u24 v{d}, 0xc00, v{d}
        v_lshl_add_u32 v{WD[n]}, v{c}, 4, v{d}''')
        if n: p(f'v_subrev_u32 v{WD[n]}, {1024*n}, v{WD[n]}')
    p(f'''s_lshl_b32 s45, {sTI}, 2
    s_add_u32 s45, s45, {sW}
    s_lshl_b32 {sT0}, s45, 5
    s_mul_i32 {sXB}, {sT0}, 1280
    s_lshl_b32 {sLX}, {sW}, 12
    s_mul_i32 s46, {sW}, {16*3072}
    s_mul_i32 s47, {sJ}, 192
    s_add_u32 {sW1B}, s46, s47
    s_mul_i32 {sLW}, {sW}, 3072
    s_add_u32 {sLW}, {sLW}, 16384
    v_lshlrev_b32 v{LIN(0)}, 4, v0''')
    if OPT['rot']:
        p(f'''s_and_b32 s45, {sTI}, 7
        s_and_b32 s46, {sJ}, 3
        s_mul_i32 s46, s46, 5
        s_lshr_b32 s46, s46, 1
        s_add_u32 s45, s45, s46
        s_cmp_ge_u32 s45, 10
        s_cselect_b32 s46, 10, 0
        s_sub_u32 {sROT}, s45, s46''')
def addr_prol(p):
    a,b,c,d,e,f_=T,T+1,T+2,T+3,U,U+1
    p(f'''v_bfe_u32 v{a}, v0, 4, 1
    v_bfe_u32 v{b}, v0, 1, 1
    v_lshl_add_u32 v{a}, v{a}, 1, v{b}
    v_bfe_u32 v{b}, v0, 2, 2
    v_and_b32 v{c}, 1, v0
    v_lshlrev_b32 v{c}, 3, v{c}
    v_lshl_add_u32 v{b}, v{b}, 8, v{c}
    v_lshrrev_b32 v{d}, 5, v0
    s_cmp_eq_u32 {sW}, 2
    s_cselect_b32 s45, 5, 1
    s_mul_i32 s46, {sW}, 5
    s_cmp_eq_u32 {sW}, 3
    s_cselect_b32 s46, 10, s46
    s_cmp_eq_u32 {sW}, 2
    s_cselect_b32 s46, 4, s46
    s_min_u32 s47, {sW}, 2
    s_lshl_b32 s47, s47, 2
    v_mov_b32 v{e}, s46
    v_mad_u32_u24 v{e}, v{a}, s45, v{e}
    v_min_u32 v{e}, 15, v{e}
    v_lshl_add_u32 v{aQ2}, v{e}, 4, v{b}
    v_add_u32 v{aQ2}, {L_PB}, v{aQ2}
    v_lshl_add_u32 v{aQ}, v{d}, 11, v{aQ2}
    v_add_u32 v{e}, s47, v{a}
    v_lshl_add_u32 v{aW2}, v{e}, 4, v{b}
    v_add_u32 v{aW2}, {L_PB+10240}, v{aW2}
    v_lshl_add_u32 v{aW}, v{d}, 11, v{aW2}
    v_mov_b32 v{e}, 0x3f803f80
    v_cmp_gt_u32 vcc, 32, v0
    v_mov_b32 v{f_}, 0''')
    for i in range(4): p(f'v_mov_b32 v{A1+i}, v{e}\nv_cndmask_b32 v{A2o+i}, v{f_}, v{e}, vcc')
    p(f'''s_mul_i32 s45, {sTI}, 5
    s_movk_i32 s46, 3072
    s_cmp_eq_u32 {sW}, 3
    s_cselect_b32 s46, 1024, s46
    v_and_b32 v{c}, 31, v0
    v_lshlrev_b32 v{c}, 4, v{c}''')
    for n in range(3):
        p(f'''v_add_u32 v{a}, s45, v{d}
        v_add_u32 v{a}, {2*n}, v{a}
        v_and_b32 v{b}, 1, v{a}
        v_lshrrev_b32 v{a}, 1, v{a}
        v_lshl_add_u32 v{b}, v{b}, 9, v{c}
        v_mad_u32_u24 v{dq[n]}, v{a}, s46, v{b}''')
    p(f'''s_lshl_b32 s45, {sW}, 10
    v_add_u32 v{vKC}, s45, v{LIN(0)}
    v_mov_b32 v{a}, {sOOB}
    v_cmp_gt_u32 vcc, 3584, v{vKC}
    s_lshl_b32 s45, {sJ}, 4
    s_add_u32 s45, s45, {sTI}
    v_cndmask_b32 v{vKC}, v{a}, v{vKC}, vcc
    s_mul_i32 s45, s45, {KV_P}
    s_add_u32 {sKVP}, s45, {WS_KV}
    s_mul_i32 s46, {sJ}, {WQ_J}
    s_add_u32 {sKVB}, s46, {WS_WQ}
    s_add_u32 {sQB}, {sKVB}, {WQ_QOFF}''')
def addr_p1lds(p):
    a,b,c,d=T,T+1,T+2,T+3
    p(f'''v_and_b32 v{a}, 31, v0
    v_lshrrev_b32 v{b}, 5, v0
    v_bfe_u32 v{c}, v0, 1, 3
    v_xor_b32 v{c}, v{c}, v{b}
    v_lshlrev_b32 v{c}, 4, v{c}
    v_lshl_add_u32 v{c}, v{a}, 7, v{c}
    v_add_u32 v{c}, {sLX}, v{c}''')
    for s in range(4):
        p(f'v_xor_b32 v{XR(0,s)}, {32*s}, v{c}')
        p(f'v_add_u32 v{XR(1,s)}, {2*SLOT}, v{XR(0,s)}\nv_add_u32 v{XR(2,s)}, {4*SLOT}, v{XR(0,s)}')
    p(f'''v_bfe_u32 v{c}, v0, 2, 2
    v_lshl_add_u32 v{c}, v{b}, 3, v{c}
    v_mul_u32_u24 v{c}, 192, v{c}
    v_bfe_u32 v{d}, v0, 4, 1
    v_lshl_add_u32 v{c}, v{d}, 5, v{c}
    v_and_b32 v{d}, 3, v0
    v_lshl_add_u32 v{W1R(0)}, v{d}, 3, v{c}
    v_add_u32 v{W1R(1)}, {2*SLOT}, v{W1R(0)}
    v_add_u32 v{W1R(2)}, {4*SLOT}, v{W1R(0)}
    v_add_u32 v{LIN(1)}, {2*SLOT}, v{LIN(0)}
    v_add_u32 v{LIN(2)}, {4*SLOT}, v{LIN(0)}''')
    p(f'''s_lshl_b32 s45, {sTI}, 5
    s_add_u32 s45, s45, {sJ}
    s_lshl_b32 s45, s45, 2
    s_lshl_b32 s46, {sJ}, 5
    s_add_u32 s46, s46, {sTI}
    s_lshl_b32 s46, s46, 2
    s_add_u32 s46, s46, 2048
    s_cmp_eq_u32 {sW}, 0
    s_cselect_b32 s45, s45, {sOOB}
    s_cselect_b32 s46, s46, {sOOB}
    v_mov_b32 v{SIG}, {sOOB}
    v_writelane_b32 v{SIG}, s45, 0
    v_writelane_b32 v{SIG}, s46, 1
    v_mov_b32 v{VAL}, 1''')
    if OPT['xtest']: p(f's_getreg_b32 s45, hwreg(HW_REG_XCC_ID, 0, 4)\ns_lshl_b32 s45, s45, 8\ns_or_b32 s45, s45, 1\nv_mov_b32 v{VAL}, s45')
def startup(p):
    tab={'x':(4,0,2048*1280),'wq':(8,8,640*3840),'w1':(16,32,640*3072),'ws':(32,72,common.WS_END),'dbg':(36,64,256),
         'wo':(12,16,640*1280),'b1':(20,40,3072),'w2':(24,48,1536*1280),'out':(28,56,2048*1280)}
    p('s_cmp_ge_u32 s2, 256\ns_cbranch_scc1 L_end')
    for n,(r,o,sz) in tab.items(): p(f's_load_dwordx2 s[{r}:{r+1}], s[0:1], {o}')
    p(f'''v_lshrrev_b32 v1, 6, v0
    v_and_b32 v0, 63, v0
    v_readfirstlane_b32 {sW}, v1
    s_and_b32 s45, s2, 7
    s_lshr_b32 s46, s2, 3
    s_and_b32 s47, s45, 1
    s_lshl_b32 s50, s47, 3
    s_and_b32 s48, s46, 7
    s_add_u32 {sTI}, s50, s48
    s_lshr_b32 s49, s45, 1
    s_lshl_b32 s50, s49, 2
    s_lshr_b32 s51, s46, 3
    s_add_u32 {sJ}, s50, s51
    s_lshl_b32 s50, s49, 3
    s_add_u32 {sTT}, s50, s48
    s_lshl_b32 s50, s47, 2
    s_add_u32 {sC}, s50, s51''')
    for n,(r,o,sz) in tab.items(): p(f's_mov_b32 s{r+2}, {sz}\ns_mov_b32 s{r+3}, 0x20000')
    addr_first(p); addr_prol(p)
    p('@wait lg')
    p(st_('karg'))
    p(f'''s_lshl_b32 s45, s2, 2
    s_or_b32 s58, s45, {sW}
    s_cmp_eq_u32 s58, 0
    s_cbranch_scc0 L_nz
    v_mov_b32 v{U}, 0
    v_mov_b32 v{U+1}, 0
    v_mov_b32 v{U+2}, 0
    v_mov_b32 v{U+3}, 0''')
    for i in range(4): p(f'buffer_store_dwordx4 {vr(U)}, v{LIN(0)}, {sWS}, 0 offen offset:{1024*i} sc1 ;#nocount')
    p(f's_movk_i32 s45, 4096\nbuffer_store_dwordx4 {vr(U)}, v{LIN(0)}, {sWS}, s45 offen sc1 ;#nocount\nL_nz:')
    p(f'''buffer_load_dwordx4 {vr(PX)}, v{vS}, {sX}, s55 offen
    buffer_load_dwordx4 {vr(PX+4)}, v{vS}, {sX}, s55 offen offset:512
    buffer_load_dwordx2 {vr(PX+8,2)}, v{vS2}, {sX}, s55 offen offset:1024''')
    for n in range(3):
        m0=f's_add_u32 m0, s56, {L_PB+4096*n}' if n<2 else f's_add_u32 m0, s57, {L_PB+8192}'
        m1=f's_add_u32 m0, s56, {L_PB+10240+4096*n}' if n<2 else f's_add_u32 m0, s57, {L_PB+10240+8192}'
        p(f'''{m0}
        buffer_load_dwordx4 v{vQ}, {sWQ}, s{48+n} offen lds ;#pl
        {m1}
        buffer_load_dwordx4 v{vW1}, {sW1}, s{51+n} offen lds ;#pl''')
def dma_stage(s,part=None):
    out=dma_stage_(s)
    k=[i for i,t in enumerate(out) if 'buffer_' in t][0]
    return out if part is None else (out[:k] if part=='pre' else out[k:])
def dma_stage_(s):
    SB=slot(s)*SLOT; out=[]
    R=OPT['rot']
    if s<10:
        if R: out.append(f's_add_u32 s46, {sROT}, {s}\ns_cmp_ge_u32 s46, 10\ns_cselect_b32 s47, 10, 0\ns_sub_u32 s46, s46, s47\ns_lshl_b32 {sRX}, s46, 7\ns_add_u32 {sRX}, {sRX}, {sXB}')
        if R: out.append(f's_mul_i32 {sRW}, s46, {64*3072}\ns_add_u32 {sRW}, {sRW}, {sW1B}')
        else: out.append(f's_add_u32 {sRW}, {sW1B}, {s*64*3072}')
        if not R: out.append(f's_add_u32 {sRX}, {sXB}, {128*s}')
        out.append(f's_add_u32 m0, {sLX}, {SB}')
        for i in range(4):
            out.append(f'buffer_load_dwordx4 v{XD4[i]}, {sX}, {sRX} offen offset:{1024*i} lds ;#st{s}')
        out[-1]+=f'\ns_add_u32 m0, {sLW}, {SB}'
        for n in range(3):
            out.append(f'buffer_load_dwordx4 v{WD[n]}, {sW1}, {sRW} offen offset:{1024*n} lds ;#st{s}')
    elif s<15:
        if R: out.append(f's_lshl_b32 s46, {sROT}, 1\ns_add_u32 s46, s46, {sW}\ns_add_u32 s46, s46, {4*(s-10)}\ns_cmp_ge_u32 s46, 20\ns_cselect_b32 s47, 20, 0\ns_sub_u32 s46, s46, s47')
        if R: out.append(f's_mul_i32 s46, s46, 6144\ns_add_u32 {sRK}, s46, {sKVB}')
        else: out.append(f's_add_u32 {sRK}, {sL6}, {sKVB}\ns_add_u32 {sRK}, {sRK}, {4*(s-10)*6144}')
        for n in range(6):
            pre=''
            if n==0: pre=f's_add_u32 m0, {sL6}, {SB}\n'
            if n==4: pre=f's_add_u32 m0, {sL6}, {SB+4096}\ns_add_u32 {sRK}, {sRK}, 4096\n'
            out.append(pre+f'buffer_load_dwordx4 v{LIN(0)}, {sWS}, {sRK} offen offset:{1024*(n%4)} sc1 lds ;#st{s}')
    else:
        if s<17:
            if R: out.append(f's_add_u32 s46, {sROT}, {sW}\ns_add_u32 s46, s46, {4*(s-15)}\ns_cmp_ge_u32 s46, 10\ns_cselect_b32 s47, 10, 0\ns_sub_u32 s46, s46, s47\ns_lshl_b32 s46, s46, 12')
            else: out.append(f's_add_u32 s46, {sLX}, {4*(s-15)*4096}')
            out.append(f's_add_u32 {sRK}, s46, {sQB}\ns_add_u32 m0, {sLX}, {SB}')
            cnt=4
        else:
            if R: out.append(f's_lshl_b32 s46, {sROT}, 1\ns_add_u32 s46, s46, {sW}\ns_add_u32 s46, s46, 16\ns_cmp_ge_u32 s46, 20\ns_cselect_b32 s47, 20, 0\ns_sub_u32 s46, s46, s47')
            else: out.append(f's_add_u32 s46, {sW}, 16')
            out.append(f's_lshl_b32 s46, s46, 11\ns_add_u32 {sRK}, s46, {sQB}\ns_lshl_b32 s46, {sW}, 11\ns_add_u32 m0, s46, {SB}')
            cnt=2
        for n in range(cnt):
            out.append(f'buffer_load_dwordx4 v{LIN(0)}, {sWS}, {sRK} offen offset:{1024*n} sc1 lds ;#st{s}')
    return out
def prologue_work(p):
    a,b,c,d,e,f_=T,T+1,T+2,T+3,U+92,U+93
    D1,D2=U+48,U+64
    Y=U
    for i in range(10):
        p(f'v_lshlrev_b32 v{Y+2*i}, 16, v{PX+i}\nv_and_b32 v{Y+2*i+1}, 0xffff0000, v{PX+i}')
        if i==0:
            p(f'''s_cmp_eq_u32 s58, 0
            s_cbranch_scc0 L_nz2
            v_mov_b32 v{a}, 0
            v_mov_b32 v{b}, 1
            buffer_store_dword v{b}, v{a}, {sDBG}, 0 offen sc1 ;#nocount
            L_nz2:''')
    def red32(r,t):
        for k in (8,4,2,1): p(f'v_add_f32_dpp v{r}, v{r}, v{r} row_ror:{k} row_mask:0xf bank_mask:0xf')
        p(f'v_mov_b32 v{t}, v{r}\nv_permlane16_swap_b32 v{r}, v{t}\nv_add_f32 v{r}, v{r}, v{t}')
    p(f'v_add_f32 v{a}, v{Y}, v{Y+1}\nv_add_f32 v{b}, v{Y+2}, v{Y+3}')
    for i in range(4,20,2): p(f'v_add_f32 v{a}, v{a}, v{Y+i}\nv_add_f32 v{b}, v{b}, v{Y+i+1}')
    p(f'v_add_f32 v{a}, v{a}, v{b}')
    red32(a,b)
    p(f'v_mul_f32 v{a}, {f32(-1.0/640)}, v{a}')
    for i in range(20): p(f'v_add_f32 v{Y+i}, v{Y+i}, v{a}')
    p(f'v_mul_f32 v{b}, v{Y}, v{Y}\nv_mul_f32 v{c}, v{Y+1}, v{Y+1}')
    for i in range(2,20,2): p(f'v_fmac_f32 v{b}, v{Y+i}, v{Y+i}\nv_fmac_f32 v{c}, v{Y+i+1}, v{Y+i+1}')
    p(f'v_add_f32 v{b}, v{b}, v{c}')
    red32(b,c)
    p('@vmwait pl\ns_barrier')
    F0=U+24
    for n in range(3):
        F=F0+8*n
        p(f'''ds_read_b64_tr_b16 {vr(F,2)}, v{aQ if n<2 else aQ2} offset:{4096*n} ;#pro
        ds_read_b64_tr_b16 {vr(F+2,2)}, v{aQ if n<2 else aQ2} offset:{4096*n+1024} ;#pro
        ds_read_b64_tr_b16 {vr(F+4,2)}, v{aW if n<2 else aW2} offset:{4096*n} ;#pro
        ds_read_b64_tr_b16 {vr(F+6,2)}, v{aW if n<2 else aW2} offset:{4096*n+1024} ;#pro''')
    R=U+20
    p(f'''v_mov_b32 v{c}, {f32(1e-5)}
    v_fmac_f32 v{c}, {f32(1.0/640)}, v{b}
    v_rsq_f32 v{e}, v{c}
    v_lshrrev_b32 v{d}, 5, v0
    v_add_u32 v{d}, s54, v{d}
    v_lshlrev_b32 v{U+94}, 4, v{d}
    v_lshlrev_b32 v{U+95}, 2, v{d}
    v_mul_f32 v{b}, v{c}, v{e}
    v_cvt_pk_bf16_f32 v{R+1}, v{a}, v{b}
    v_mov_b32 v{R+3}, v{e}
    v_lshlrev_b32 v{c}, 16, v{R+1}
    v_and_b32 v{d}, 0xffff0000, v{R+1}
    v_sub_f32 v{c}, v{a}, v{c}
    v_sub_f32 v{d}, v{b}, v{d}
    v_cvt_pk_bf16_f32 v{R}, v{a}, v{c}
    v_mov_b32 v{f_}, 0
    v_cvt_pk_bf16_f32 v{R+2}, v{d}, v{f_}
    s_cmp_eq_u32 {sW}, 2
    s_cselect_b32 s56, 0xff000000, 0
    s_mov_b32 s57, s56
    s_lshl_b32 s48, {sW}, 10
    s_cmp_eq_u32 {sW}, 3
    s_cselect_b32 s48, {WQ_QOFF}, s48
    s_add_u32 s55, s48, {sKVB}
    s_mov_b32 s48, {WS_ST}
    s_mov_b32 s49, {WS_RS}''')
    for n in range(3):
        F=F0+8*n
        for i in range(4): p(f'v_cndmask_b32 v{F+i}, v{F+i}, v{f_}, s[56:57]')
        A=A1 if n<2 else A2o
        if n==2: p('s_mov_b32 exec_hi, 0')
        p(f'buffer_store_dwordx4 {vr(F)}, v{dq[n]}, {sWS}, s55 offen sc1 ;#pst')
        if n==2: p('s_mov_b32 exec_hi, -1')
        p(f'{M32} {vr(D1,16)}, {vr(A)}, {vr(F)}, {"0" if n==0 else vr(D1,16)}')
        p(f'{M32} {vr(D2,16)}, {vr(A)}, {vr(F+4)}, {"0" if n==0 else vr(D2,16)}')
    p(f'''s_mov_b32 exec_lo, 1
    s_mov_b32 exec_hi, 1
    buffer_store_dwordx4 {vr(R)}, v{U+94}, {sWS}, s48 offen sc1 ;#pst
    buffer_store_dword v{R+3}, v{U+95}, {sWS}, s49 offen sc1 ;#pst
    s_mov_b64 exec, -1
    v_mov_b32 v{U}, -1
    v_mov_b32 v{U+1}, -1
    v_mov_b32 v{U+2}, -1
    v_mov_b32 v{U+3}, -1
    buffer_store_dwordx4 {vr(U)}, v{vKC}, {sWS}, {sKVP} offen sc1 ;#pst
    s_lshl_b32 s45, {sJ}, 4
    s_add_u32 s45, s45, {sTI}
    s_mul_i32 s45, s45, {CS_P}
    s_add_u32 s45, s45, {WS_CS}
    s_lshl_b32 s46, {sW}, 7
    s_add_u32 s46, s46, s45
    s_add_u32 s46, s46, 384
    s_min_u32 s47, {sW}, 2
    s_lshl_b32 s47, s47, 7
    s_add_u32 s47, s47, s45
    v_lshlrev_b32 v{a}, 2, v0
    v_mov_b32 v{b}, 0
    s_mov_b32 exec_hi, 0
    buffer_store_dword v{D1}, v{a}, {sWS}, s46 offen sc1 ;#pst
    buffer_store_dword v{D2}, v{a}, {sWS}, s47 offen sc1 ;#pst
    s_mov_b32 exec_hi, -1
    buffer_load_dword v{TMP+23}, v{b}, {sDBG}, 0 offen sc1 ;#dbg''')
def addr_wc(st):
    a,b,c,d,e,f_=TMP,TMP+1,TMP+2,TMP+3,TMP+4,TMP+5
    vC=UD+4
    st.add(f'''v_lshrrev_b32 v{a}, 4, v0
    v_and_b32 v{b}, 15, v0
    v_min_u32 v{c}, 9, v{b}
    v_mul_u32_u24 v{vC}, 0x500, v{a}
    v_lshl_add_u32 v{vC}, v{c}, 4, v{vC}
    s_lshl_b32 s48, {sW}, 2
    v_add_u32 v{a}, s48, v{a}
    v_bfe_u32 v{e}, v0, 2, 2
    v_and_b32 v{f_}, 3, v0
    v_lshlrev_b32 v{f_}, 3, v{f_}
    v_lshl_add_u32 v{e}, v{e}, 8, v{f_}
    v_lshlrev_b32 v{f_}, 4, v{b}
    s_mul_i32 s49, {sTT}, 6
    s_lshr_b32 s50, {sTT}, 1
    s_mul_i32 s50, s50, 5
    s_add_u32 s50, s50, 192
    s_movk_i32 s51, 5120''')
    for n in range(4):
        wo=n>=2
        st.add(f'''v_add_u32 v{b}, {16*(n&1)}, v{a}
        v_min_u32 v{b}, {24 if wo else 29}, v{b}
        v_mul_u32_u24 v{c}, 52, v{b}
        v_lshrrev_b32 v{c}, 8, v{c}
        v_mul_u32_u24 v{d}, 5, v{c}
        v_sub_u32 v{b}, v{b}, v{d}
        v_lshrrev_b32 v{d}, 1, v{c}
        v_lshlrev_b32 v{UA+n}, 12, v{d}
        v_and_b32 v{d}, 1, v{c}
        v_lshl_add_u32 v{UA+n}, v{d}, 10, v{UA+n}
        v_lshl_add_u32 v{UA+n}, v{b}, 5, v{UA+n}
        v_add_u32 v{UA+n}, v{e}, v{UA+n}
        v_add_u32 v{c}, {'s50' if wo else 's49'}, v{c}
        v_lshrrev_b32 v{d}, 2, v{c}
        v_and_b32 v{c}, 3, v{c}
        v_lshl_add_u32 v{c}, v{c}, 8, v{f_}
        v_lshl_add_u32 v{c}, v{b}, 10, v{c}
        v_mad_u32_u24 v{UD+n}, v{d}, s51, v{c}''')
def wc_loads():
    vC=UD+4; out=[]
    out.append(f's_mul_i32 s46, {sTT}, 48\ns_lshl_b32 s47, {sW}, 2\ns_add_u32 s46, s46, s47\ns_mul_i32 s46, s46, 1280\ns_mul_i32 s47, {sC}, 160\ns_add_u32 {sRW}, s46, s47')
    out.append(f's_lshl_b32 {sRX}, {sW}, 10')
    for n in range(3):
        out.append(f's_add_u32 m0, {sRX}, {L_WC+4096*n}\ns_add_u32 s45, {sRW}, {16*1280*n}\nbuffer_load_dwordx4 v{vC}, {sW2}, s45 offen lds ;#wcl')
    out.append(f's_lshr_b32 s46, {sTT}, 1\ns_mul_i32 s46, s46, {40*1280}\ns_mul_i32 s47, {sC}, 160\ns_add_u32 {sRW}, s46, s47')
    for n in range(3,6):
        if n==3: a=f's_mul_i32 s46, {sW}, {4*1280}'
        elif n==4: a=f's_mul_i32 s46, {sW}, {4*1280}\ns_add_u32 s46, s46, {20*1280}'
        else: a=f's_lshr_b32 s46, {sW}, 1\ns_mul_i32 s46, s46, {20*1280}\ns_add_u32 s46, s46, {16*1280}'
        out.append(f'{a}\ns_add_u32 s45, {sRW}, s46\ns_add_u32 m0, {sRX}, {L_WC+4096*n}\nbuffer_load_dwordx4 v{vC}, {sWO}, s45 offen lds ;#wcl')
    return out
def wc_work(p):
    p('@vmwait wcl\ns_barrier')
    for n in range(4):
        F=WCD+4*n; o=L_WC+(48*256 if n>=2 else 0)
        p(f'ds_read_b64_tr_b16 {vr(F,2)}, v{UA+n} offset:{o}\nds_read_b64_tr_b16 {vr(F+2,2)}, v{UA+n} offset:{o+2048}')
    p(f's_mul_i32 s48, {sC}, {WC_C}\ns_add_u32 s48, s48, {WS_WC}')
    return [f'buffer_store_dwordx4 {vr(WCD+4*n)}, v{UD+n}, {sWS}, s48 offen sc1 ;#wcst' for n in range(4)]
def addr_kv(st):
    a,b,c,d,e=TMP,TMP+1,TMP+2,TMP+3,TMP+4
    st.add(f'''v_and_b32 v{a}, 31, v0
    v_lshrrev_b32 v{b}, 5, v0
    s_mul_i32 {sL6}, {sW}, 6144
    s_lshl_b32 s48, {sTI}, 2
    s_add_u32 s48, s48, {sW}
    s_lshl_b32 s48, s48, 1
    s_mul_i32 s48, s48, {X_T}
    s_add_u32 s48, s48, {WS_X}
    s_mul_i32 s49, {sJ}, 3072
    s_add_u32 {sACT}, s48, s49
    s_mul_i32 s49, {sJ}, 1280
    s_add_u32 s48, s48, {192*256}
    s_add_u32 {sOST}, s48, s49
    s_mov_b32 {sC1}, {f32(1.000001)}
    s_mov_b32 {sEPS}, {f32(1e-6)}
    s_mov_b32 s74, 0xff00ff00
    s_mov_b32 s75, 0xff00ff00
    v_bfe_u32 v{c}, v0, 4, 1
    v_mul_u32_u24 v{c}, {X_T}, v{c}
    v_lshl_add_u32 v{c}, v{b}, 8, v{c}
    v_and_b32 v{d}, 15, v0
    v_lshl_add_u32 v{ACTO}, v{d}, 4, v{c}
    s_add_u32 s48, {sL6}, {L_EX}
    v_add_u32 v{EXW}, s48, v{LIN(0)}
    s_lshr_b32 s49, {sW}, 1
    s_lshl_b32 s49, s49, 12
    s_add_u32 s49, s49, {L_EX}
    v_add_u32 v{EXA}, s49, v{LIN(0)}
    s_and_b32 s49, {sW}, 1
    s_lshl_b32 s49, s49, 11
    s_add_u32 s49, s49, {L_EX+2048}
    v_add_u32 v{EXB}, s49, v{LIN(0)}
    v_bfe_u32 v{c}, v0, 2, 2
    v_and_b32 v{d}, 1, v0
    v_lshl_add_u32 v{c}, v{d}, 5, v{c}
    v_lshlrev_b32 v{c}, 4, v{c}
    v_bfe_u32 v{d}, v0, 1, 1
    v_lshl_add_u32 v{c}, v{d}, 3, v{c}
    v_bfe_u32 v{d}, v0, 4, 1
    v_lshl_add_u32 v{c}, v{d}, 10, v{c}
    s_add_u32 s48, s48, {4096+256}
    v_add_u32 v{EXT}, s48, v{c}''')
    eg,vb,zz=TMP+5,TMP+6,TMP+7
    st.add(f'''s_and_b32 s56, {sW}, 1
    s_mul_i32 s57, s56, 24
    v_add_u32 v{eg}, s57, v{a}''')
    st.add(f'''s_cmp_eq_u32 s56, 1
    s_cselect_b32 s48, 0x0100ff00, -1
    s_cselect_b32 s50, 0x01000000, 0''',glue=True)
    st.add(f'''s_mov_b32 s49, s48
    s_mov_b32 s51, s50
    s_lshr_b32 s56, {sW}, 1
    v_cmp_le_u32 s[52:53], 20, v{eg}
    v_mov_b32 v{zz}, {sOOB}
    v_mov_b32 v{vb}, 20''')
    for q in range(4):
        st.add(f'''v_lshlrev_b32 v{c}, 2, v{b}
        s_lshl_b32 s57, s56, 5
        s_add_u32 s57, s57, {8*q}
        v_add_u32 v{c}, s57, v{c}
        v_cmp_le_u32 vcc, 20, v{c}
        v_cndmask_b32 v{d}, 0, v{vb}, vcc
        v_sub_u32 v{c}, v{c}, v{d}
        v_sub_u32 v{e}, v{eg}, v{d}
        v_cndmask_b32 v{e}, v{e}, v{vb}, s[50:51]
        v_lshrrev_b32 v{d}, 2, v{d}
        v_mul_u32_u24 v{d}, 336, v{d}
        v_mul_u32_u24 v{e}, 80, v{e}
        v_lshl_add_u32 v{c}, v{c}, 2, v{d}
        v_add_u32 v{c}, v{c}, v{e}
        s_xnor_b64 s[54:55], vcc, s[52:53]
        s_or_b64 s[54:55], s[54:55], s[50:51]
        s_and_b64 s[54:55], s[54:55], s[48:49]''')
        if q>0: st.add(f's_cmp_eq_u32 s56, 0\ns_cselect_b64 s[54:55], s[54:55], 0',glue=True)
        st.add(f'v_cndmask_b32 v{KVO+q}, v{zz}, v{c}, s[54:55]')
def addr_p2(st):
    a,b=TMP,TMP+1
    st.add(f'''v_add_u32 v{WOF[1]}, 4096, v{LIN(0)}
    v_add_u32 v{XO[1]}, {X_T}, v{LIN(0)}
    v_add_u32 v{XO[2]}, {2*X_T}, v{LIN(0)}
    v_add_u32 v{XO[3]}, {3*X_T}, v{LIN(0)}
    s_mul_i32 s48, {sTT}, {4*X_T}
    s_add_u32 s48, s48, {WS_X}
    s_mul_i32 s49, {sC}, {WC_C}
    s_add_u32 s49, s49, {WS_WC}
    s_mul_i32 s50, {sW}, {12*1024}
    s_add_u32 {sXA}, s48, s50
    s_mul_i32 s50, {sW}, {12*5120}
    s_add_u32 {sWA}, s49, s50
    s_mul_i32 s50, {sW}, {5*1024}
    s_add_u32 s48, s48, {48*1024}
    s_add_u32 {sXO}, s48, s50
    s_mul_i32 s50, {sW}, {5*5120}
    s_add_u32 s49, s49, {48*5120}
    s_add_u32 {sWO2}, s49, s50
    s_lshl_b32 s48, {sTT}, 2
    s_add_u32 s48, s48, {sW}
    s_mul_i32 s48, s48, {16*1280}
    s_mul_i32 s49, {sC}, 160
    s_add_u32 {sRO}, s48, s49
    v_and_b32 v{a}, 15, v0
    v_mul_u32_u24 v{a}, 0x500, v{a}
    v_lshrrev_b32 v{b}, 4, v0
    v_lshl_add_u32 v{RESA}, v{b}, 3, v{a}''')
POLL1A=TMP+20; POLL1=TMP+21
def poll1_addr():
    a=POLL1A
    return f'''s_lshl_b32 s58, {sTI}, 7
    s_lshl_b32 s59, {sJ}, 7
    s_add_u32 s59, s59, 2048
    v_and_b32 v{a}, 15, v0
    v_lshlrev_b32 v{a}, 2, v{a}
    v_add_u32 v{POLL1}, s59, v{a}
    v_add_u32 v{a}, s58, v{a}
    s_mov_b32 s58, 0xffff0000
    s_mov_b32 s59, 0xffff0000
    v_cndmask_b32 v{a}, v{a}, v{POLL1}, s[58:59]'''
def addr_r(p):
    a,b,c,d=96,97,98,99
    tab=[0,2,1,3,4,10,9,11,12,13]; val=sum(v<<(4*i) for i,v in enumerate(tab))
    p(f'''s_lshl_b32 s48, {sW}, 6
    v_add_u32 v{a}, s48, v0
    v_min_u32 v{a}, 209, v{a}
    v_lshlrev_b32 v{RQ}, 4, v{a}
    v_mul_u32_u24 v{b}, 0x3334, v{a}
    v_lshrrev_b32 v{b}, 16, v{b}
    v_mul_u32_u24 v{c}, 5, v{b}
    v_sub_u32 v{c}, v{a}, v{c}
    v_cmp_le_u32 vcc, 21, v{b}
    v_cndmask_b32 v{d}, 0, 1, vcc
    v_mul_u32_u24 v{a}, 21, v{d}
    v_sub_u32 v{b}, v{b}, v{a}
    v_mul_u32_u24 v{d}, 5, v{d}
    v_add_u32 v{c}, v{c}, v{d}
    v_lshlrev_b32 v{c}, 2, v{c}
    s_mov_b32 s48, {val&0xffffffff}
    s_mov_b32 s49, {val>>32}
    v_lshrrev_b64 v[100:101], v{c}, s[48:49]
    v_and_b32 v{c}, 15, v100
    v_mul_u32_u24 v{b}, {A2P}, v{b}
    v_lshl_add_u32 v{b}, v{c}, 3, v{b}
    v_add_u32 v{RWA}, {L_A2}, v{b}
    v_and_b32 v{a}, 31, v0
    v_min_u32 v{a}, 20, v{a}
    v_mul_u32_u24 v{a}, {A2P}, v{a}
    v_lshrrev_b32 v{c}, 5, v0
    v_lshl_add_u32 v{a}, v{c}, 4, v{a}
    v_add_u32 v{RRA}, {L_A2}, v{a}
    s_lshl_b32 s48, {sW}, 10
    s_add_u32 s48, s48, {L_A2}
    v_add_u32 v{A2Z}, s48, v{LIN(0)}''')
    for i in range(4): p(f'v_mov_b32 v{NEG+i}, -1\nv_mov_b32 v{ZER+i}, 0')
CSA=TMP+2; BIA=TMP+20
def stats_issue():
    a,b=TMP,TMP+1
    t=f'''v_min_u32 v{b}, 55, v0
    v_lshlrev_b32 v{CSA}, 4, v{b}
    s_lshl_b32 s45, {sJ}, 2
    s_add_u32 s45, s45, {sW}
    s_mul_i32 s45, s45, {4*CS_P}
    s_add_u32 s45, s45, {WS_CS}
    '''
    for i in range(4): t+=f'buffer_load_dwordx4 {vr(TMP+4+4*i)}, v{CSA}, {sWS}, s45 offen offset:{CS_P*i} sc1\n'
    t+=f'''v_and_b32 v{a}, 31, v0
    v_lshlrev_b32 v{b}, 4, v{a}
    s_lshl_b32 s45, {sT0}, 4
    s_add_u32 s45, s45, {WS_ST}
    buffer_load_dwordx4 {vr(SX)}, v{b}, {sWS}, s45 offen sc1
    v_lshrrev_b32 v{b}, 5, v0
    v_lshlrev_b32 v{b}, 4, v{b}
    s_lshl_b32 s45, {sT0}, 2
    s_add_u32 s45, s45, {WS_RS}
    '''
    for q in range(4): t+=f'buffer_load_dwordx4 {vr(RSC+4*q)}, v{b}, {sWS}, s45 offen offset:{32*q} sc1\n'
    t+=f'v_lshlrev_b32 v{a}, 1, v{a}\ns_mul_i32 s45, {sJ}, 192\n'
    for k in range(3): t+=f'buffer_load_ushort v{BIA+k}, v{a}, {sB1}, s45 offen offset:{64*k}\n'
    return t
def stats_a(p):
    S=TMP+4
    for i in (1,3):
        for k in range(4): p(f'v_add_f32 v{S+4*(i-1)+k}, v{S+4*(i-1)+k}, v{S+4*i+k}')
    for k in range(4): p(f'v_add_f32 v{S+k}, v{S+k}, v{S+8+k}')
    p(f'''s_mul_i32 s48, {sW}, {CS_P}
    s_add_u32 s48, s48, {L_CS}
    v_add_u32 v{CSA}, s48, v{CSA}
    ds_write_b128 v{CSA}, {vr(S)}
    v_and_b32 v{TMP}, 31, v0
    v_lshlrev_b32 v{TMP}, 2, v{TMP}
    v_add_u32 v{TMP}, {L_CS}, v{TMP}
    v_mov_b32 v{RSTD}, v{SX+3}
    v_mov_b32 v{SX+3}, 0
    v_mul_f32 v{RL}, {f32(LOG2E)}, v{RSTD}
    v_mul_f32 v{M2R}, -2.0, v{RSTD}''')
    hm=TMP+1; z=TMP+2; one=TMP+3
    p(f'''v_cmp_gt_u32 vcc, 32, v0
    v_mov_b32 v{z}, 0
    v_cndmask_b32 v{hm}, 0, 1.0, vcc
    s_mov_b32 s48, 0xff000000
    s_mov_b32 s49, 0
    v_cndmask_b32 v{one}, 0, 1.0, s[48:49]''')
    for t in range(3): p(f'v_lshlrev_b32 v{BIA+t}, 16, v{BIA+t}\nv_mul_f32 v{BIA+t}, v{BIA+t}, v{hm}')
    for r in range(16): p(f'v_mul_f32 v{RLC+r}, {f32(LOG2E)}, v{RSC+r}')
def stats_b(st,tiles,g):
    hm=TMP+1; z=TMP+2; one=TMP+3
    for t in tiles:
        for w in range(4): st.add(f'ds_read_b32 v{SWB+4*t+w}, v{TMP} offset:{CS_P*w+128*t}',g)
    g+=3+len(tiles)
    for ops in ('v_add_f32 v{B}, v{B}, v{B1}\nv_add_f32 v{B2}, v{B2}, v{B3}','v_add_f32 v{B2}, v{B}, v{B2}','v_mul_f32 v{B2}, v{B2}, v{hm}',
                'v_cvt_pk_bf16_f32 v{B}, v{B2}, v{B2}','v_lshlrev_b32 v{B3}, 16, v{B}','v_sub_f32 v{B2}, v{B2}, v{B3}',
                'v_cvt_pk_bf16_f32 v{B1}, v{B2}, v{bias}\nv_mov_b32 v{B3}, 0','v_cvt_pk_bf16_f32 v{B2}, v{bias}, v{z}'):
        for t in tiles:
            B=SWB+4*t; bias=BIA+t if t<3 else (one if t==5 else z)
            st.add(ops.format(B=B,B1=B+1,B2=B+2,B3=B+3,hm=hm,bias=bias,z=z),g)
def mish_stream(st, gate):
    k=0
    for t in range(3):
        for rq in range(2):
            PK=TMP+16+4*(k&1); k+=1
            for g in range(2):
                A=ACW+16*t+8*rq+4*g; E=TMP+8*g; Uu=E+4
                for op in ('v_mul_f32 v{e}, v{a}, v{RL}','v_exp_f32 v{e}, v{e}','v_add_f32 v{u}, 2.0, v{e}','v_fma_f32 v{e}, v{e}, v{u}, 2.0',
                           'v_rcp_f32 v{e}, v{e}','v_fma_f32 v{e}, v{e}, v{M2R}, v{RSTD}','v_mul_f32 v{e}, v{a}, v{e}'):
                    for i in range(4): st.add(op.format(e=E+i,u=Uu+i,a=A+i,RL=RL,M2R=M2R,RSTD=RSTD),gate)
                st.add(f'v_cvt_pk_bf16_f32 v{PK+2*g}, v{E}, v{E+1}\nv_cvt_pk_bf16_f32 v{PK+2*g+1}, v{E+2}, v{E+3}',gate)
            st.add(f'buffer_store_dwordx4 {vr(PK)}, v{ACTO}, {sWS}, {sACT} offen offset:{(4*t+2*rq)*256} sc1 ;#act',gate)
def phi_ops(st, gate, A, rs, rl, E, Uu, dst):
    for i in range(4): st.add(f'v_mul_f32 v{E+i}, v{A+i}, v{rl(i)}',gate)
    for i in range(4): st.add(f'v_exp_f32 v{E+i}, v{E+i} clamp',gate)
    for i in range(4): st.add(f'v_fma_f32 v{Uu+i}, v{A+i}, v{rs(i)}, {sC1}',gate)
    for i in range(4): st.add(f'v_add_f32 v{E+i}, {sEPS}, v{E+i}',gate)
    for i in range(4): st.add(f'v_max_f32 v{E+i}, v{E+i}, v{Uu+i}',gate)
    st.add(f'v_cvt_pk_bf16_f32 v{dst}, v{E}, v{E+1}\nv_cvt_pk_bf16_f32 v{dst+1}, v{E+2}, v{E+3}',gate)
def kv_stream(st, gate):
    k=0
    for tile,AC in ((1,ACV),(0,ACK),(2,ACR)):
        for ks in range(2):
            PK=TMP+16+4*(k&1); k+=1
            for g in range(2):
                r0=8*ks+4*g; A=AC+r0; E=TMP+8*g; Uu=E+4
                if tile==0: phi_ops(st,gate,A,lambda i:RSC+r0+i,lambda i:RLC+r0+i,E,Uu,PK+2*g)
                elif tile==1:
                    for i in range(4): st.add(f'v_mul_f32 v{E+i}, v{A+i}, v{RSC+r0+i}',gate)
                    st.add(f'v_cvt_pk_bf16_f32 v{PK+2*g}, v{E}, v{E+1}\nv_cvt_pk_bf16_f32 v{PK+2*g+1}, v{E+2}, v{E+3}',gate)
                else:
                    for i in range(4): st.add(f'v_mul_f32 v{E+i}, v{A+i}, v{RLC+r0+i}',gate)
                    for i in range(4): st.add(f'v_exp_f32 v{E+i}, v{E+i} clamp',gate)
                    for i in range(4): st.add(f'v_mul_f32 v{A+i}, v{A+i}, v{RSC+r0+i}',gate)
                    for i in range(4): st.add(f'v_add_f32 v{E+i}, {sEPS}, v{E+i}',gate)
                    for i in range(4): st.add(f'v_add_f32 v{Uu+i}, {sC1}, v{A+i}',gate)
                    for i in range(4): st.add(f'v_max_f32 v{E+i}, v{E+i}, v{Uu+i}',gate)
                    for i in range(4): st.add(f'v_cndmask_b32 v{E+i}, v{E+i}, v{A+i}, {sMV}',gate)
                    st.add(f'v_cvt_pk_bf16_f32 v{PK+2*g}, v{E}, v{E+1}\nv_cvt_pk_bf16_f32 v{PK+2*g+1}, v{E+2}, v{E+3}',gate)
            st.add(f'ds_write_b128 v{EXW}, {vr(PK)} offset:{2048*tile+1024*ks} ;#ex',gate)
def w1_pass(p):
    mf=[]; reads=[]; fr=0
    for ks in range(40):
        s=ks//4; q=ks%4; sl=slot(s); g=grp(sl); o=(sl%2)*SLOT
        reads.append((f'ds_read_b128 {ar(4*ks)}, v{XR(g,q)} offset:{o} ;#rd{s}',s,len(mf)))
        for t in range(3):
            b=POOL+4*(fr%NP); fr+=1; off=o+16384+q*3072+64*t
            reads.append((f'ds_read_b64_tr_b16 {ar(b,2)}, v{W1R(g)} offset:{off} ;#rd{s}\nds_read_b64_tr_b16 {ar(b+2,2)}, v{W1R(g)} offset:{off+768} ;#rd{s}',s,len(mf)))
            D=vr(ACW+16*t,16)
            mf.append(f'{M32} {D}, {ar(b)}, {ar(4*ks)}, {"0" if ks==0 else D}')
    dma=Stream(); fil=Stream()
    addr_wc(fil); addr_kv(fil); addr_p2(fil)
    def mkopen(s):
        def f(m):
            flush(p,dma)
            if s==9: flush(p,fil)
            head=(f'@lgwait rd{s-1}\n' if s>0 else '@lgwait pro\n')+f'@vmwait st{s}\n'
            if s==OPT['sig']: head+='@vmwait dbg\n'
            head+='s_barrier\n'
            if s<=5:
                for t in dma_stage(s+4,'loads'): dma.add(t,glue=True)
            if s<5:
                for t in dma_stage(s+5,'pre'): dma.add(t,glue=True)
            if s==OPT['sig']:
                head+=f'v_readfirstlane_b32 s58, v{TMP+23}\n'
                head+=fallback('dbg',f'v_mov_b32 v{TMP+22}, 0\nbuffer_load_dword v{TMP+23}, v{TMP+22}, {sDBG}, 0 offen sc1\ns_waitcnt vmcnt(0)\nv_readfirstlane_b32 s58, v{TMP+23}','s_cmp_lg_u32 s58, 0')
                head+=f'\nbuffer_store_dword v{VAL}, v{SIG}, {sWS}, 0 offen sc1\n'+st_('sig1')
            if s==OPT['pp']:
                head+=poll1_addr()+f'\nbuffer_load_dword v{POLL1}, v{POLL1A}, {sWS}, 0 offen sc1 ;#poll1\n'
            if s==max(OPT['pp'],6):
                for t in wc_loads(): dma.add(t,glue=True)
            if s==9:
                head+=h1_check()
            return head
        return f
    opens={s:mkopen(s) for s in range(10)}
    for t in dma_stage(4,'pre'): p(t)
    run_pass(p,mf,reads,opens,[fil],pre=dma,depth=OPT['depth'],delay=OPT['delay'],maxrd=OPT['maxrd'])
    return fr
def h1_check():
    t='@vmwait poll1\n'+fallback('h1',f'buffer_load_dword v{POLL1}, v{POLL1A}, {sWS}, 0 offen sc1',
                                  f'v_cmp_ne_u32 s[58:59], 0, v{POLL1}\ns_nop 1\ns_cmp_eq_u64 s[58:59], -1')
    if OPT['xtest']: t+=f'\nv_readlane_b32 s58, v{POLL1}, 16\ns_nop 3\nv_cmp_eq_u32 s[58:59], s58, v{POLL1}\ns_nop 3\ns_and_b32 s58, s58, 0x00ff0000\ns_cmp_eq_u32 s58, 0x00ff0000\ns_cselect_b32 s84, 0, 1\n'
    t+='\n'+st_('h1ok')+stats_issue()
    for s in (10,11,12): t+='\n'.join(dma_stage(s))+'\n'
    return t
def bubble(p):
    p(st_('w1done'))
    addr_r(p)
    for t in wc_work(p): p(t)
    stats_a(p)
def kvq_pass(p,fr):
    mf=[]; reads=[]; hooks={}
    dma=Stream(); scs=Stream(); st1=Stream()
    mc=OPT['mc']
    def rd(text,s): reads.append((text,s,len(mf)))
    for ks in range(40):
        s=10+ks//8; sl=slot(s); g=grp(sl); o=(sl%2)*SLOT
        for t,AC in enumerate((ACK,ACV,ACR)):
            if len(mf)==mc:
                hooks[mc-1]=lambda m:(flush(p,scs),'')[1]
                for tt in range(3):
                    D=vr(ACW+16*tt,16); mf.append(f'{M32} {D}, {vr(SWB+4*tt)}, {vr(SX)}, {D}')
            b=POOL+4*(fr%NP); fr+=1
            rd(f'ds_read_b128 {ar(b)}, v{LIN(g)} offset:{o+(3*(ks%8)+t)*1024} ;#rd{s}',s)
            D=vr(AC,16); mf.append(f'{M32} {D}, {ar(4*ks)}, {ar(b)}, {"0" if ks==0 else D}')
    def chk(m):
        assert len(st1.q)<=nleft, 'column-sum operands not ready'
        print('left in st1 at kv end',len(st1.q),'kv items',nkv,file=sys.stderr)
        return ''
    hooks[len(mf)-1]=chk
    for t,AC in ((1,ACV),(0,ACK),(2,ACR)):
        D=vr(AC,16); mf.append(f'{M32} {D}, {vr(SX)}, {vr(SWB+12+4*t)}, {D}')
    mf[-1]+='\n'+st_('kvdone')
    g_kv=len(mf)+1
    for ks in range(40):
        s=15+ks//16; sl=slot(s); g=grp(sl); o=(sl%2)*SLOT
        b=POOL+4*(fr%NP); fr+=1
        rd(f'ds_read_b128 {ar(b)}, v{LIN(g)} offset:{o+(ks%16)*1024} ;#rd{s}',s)
        D=vr(ACQ,16); mf.append(f'{M32} {D}, {ar(b)}, {ar(4*ks)}, {"0" if ks==0 else D}')
    D=vr(ACQ,16); mf.append(f'{M32} {D}, {vr(SWB+24)}, {vr(SX)}, {D}')
    def mkopen(s):
        def f(m):
            flush(p,dma)
            head=(f'@lgwait rd{s-1}\n' if s>10 else '@wait lg\n')+f'@vmwait st{s}\n'
            if s==13: head+='@vmwait wcst\n'
            head+='s_barrier\n'
            if s==10:
                head+=st_('kvstart')
                for x in (13,14):
                    for t in dma_stage(x): dma.add(t,glue=True)
                stats_b(scs,(0,1,2),0)
            elif s<=13:
                for t in dma_stage(s+4): dma.add(t,glue=True)
            if s==13:
                head+=f'''s_lshl_b32 s58, {sC}, 5
                s_add_u32 s58, s58, {sTT}
                s_lshl_b32 s58, s58, 2
                s_add_u32 s58, s58, 4096
                s_cmp_eq_u32 {sW}, 0
                s_cselect_b32 s58, s58, {sOOB}
                v_mov_b32 v{XD[0]}, {sOOB}
                v_writelane_b32 v{XD[0]}, s58, 0
                buffer_store_dword v{VAL}, v{XD[0]}, {sWS}, 0 offen sc1
                '''
            return head
        return f
    opens={s:mkopen(s) for s in range(10,18)}
    g=mc+4
    st1.add(f'buffer_store_dwordx4 {vr(NEG)}, v{ACTO}, {sWS}, {sOST} offen sc1 ;#act\nbuffer_store_dwordx4 {vr(NEG)}, v{ACTO}, {sWS}, {sOST} offen offset:512 sc1 ;#act',0)
    st1.add(f's_mov_b32 exec_hi, 0\nbuffer_store_dwordx4 {vr(NEG)}, v{ACTO}, {sWS}, {sOST} offen offset:1024 sc1 ;#act\ns_mov_b32 exec_hi, -1',0,glue=True)
    stats_b(st1,(3,4,5,6),mc-4); n0=len(st1.q)
    mish_stream(st1,g); n1=len(st1.q); kv_stream(st1,g_kv); nleft=len(st1.q)-n0; nkv=len(st1.q)-n1
    run_pass(p,mf,reads,opens,[scs,st1],pre=dma,depth=OPT['kdepth'],delay=OPT['delay'],maxrd=3,hooks=hooks)
CPA=XD[0]; CPV=XD[1]
def p1_tail(p):
    p('@wait lg\ns_barrier\n'+st_('exch'))
    for u in range(4):
        for ks in range(2):
            k=2*u+ks
            p(f'ds_read_b128 {ar(POOL+8*k)}, v{EXA} offset:{6144*u+1024*ks}\nds_read_b128 {ar(POOL+8*k+4)}, v{EXB} offset:{6144*u+1024*ks}')
    p(f'ds_read_b64_tr_b16 {vr(QP+8,2)}, v{EXT}\nds_read_b64_tr_b16 {vr(QP+10,2)}, v{EXT} offset:64')
    p(f'''s_lshl_b32 s58, {sC}, 7
    s_add_u32 s58, s58, 4096
    v_and_b32 v{CPA}, 31, v0
    v_lshl_add_u32 v{CPA}, v{CPA}, 2, s58
    buffer_load_dword v{CPV}, v{CPA}, {sWS}, 0 offen sc1 ;#cpoll
    ds_write_b128 v{A2Z}, {vr(ZER)}''')
    KD=ACR; D=vr(KD,16)
    st=Stream()
    for g in range(4): phi_ops(st,0,ACQ+4*g,lambda i:RSTD,lambda i:RL,TMP+8*(g&1),TMP+8*(g&1)+4,QP+2*g)
    mf=[f'{M32} {D}, {ar(POOL+8*k)}, {ar(POOL+8*k+4)}, {"0" if k==0 else D}' for k in range(8)]
    run_pass(p,mf,[],{},[st],drain=False)
    for _ in range(12):
        if st.q: p.extend(st.q.pop(0)[1])
    for q in range(4):
        p(f'v_min_u32 v{KD+4*q}, -2, v{KD+4*q}\nbuffer_store_dwordx4 {vr(KD+4*q)}, v{KVO+q}, {sWS}, {sKVP} offen sc1 ;#kvp')
    p(st_('kvst'))
    p('@vmwait cpoll\n'+fallback('c',f'buffer_load_dword v{CPV}, v{CPA}, {sWS}, 0 offen sc1',
                                  f'v_cmp_ne_u32 s[58:59], 0, v{CPV}\ns_nop 1\ns_cmp_eq_u64 s[58:59], -1'))
    p(f'''v_mov_b32 v{VAL}, 3
    @wait lg
    s_barrier
    buffer_store_dword v{VAL}, v{SIG}, {sWS}, 0 offen sc1''')
    return st
WS_=lambda k:(ar(20*k) if k<8 else None)
def wslot(k):
    tab={8:('v',100),9:('v',136),10:('a',0),11:('a',20),12:('a',40),13:('a',60),14:('a',80),15:('a',100),16:('a',120)}
    f,b=tab.get(k,('a',20*k))
    return lambda n:f'{f}[{b+4*n}:{b+4*n+3}]'
def xslot(k):
    tab={0:('a',160),1:('a',176),2:('a',192),3:('a',208),4:('a',224),5:('a',240),6:('v',164),7:('v',180),
         8:('v',120),9:('v',196),10:('v',212),11:('a',160),12:('a',176),13:('a',192),14:('a',208),15:('a',224),16:('a',240)}
    f,b=tab[k]
    return lambda t:f'{f}[{b+4*t}:{b+4*t+3}]'
def wload(k):
    base,kk=(sWA,k) if k<12 else (sWO2,k-12)
    w=wslot(k); out=[]
    for n in range(5):
        pre=(f's_add_u32 s45, {base}, {kk*5120}\n' if n==0 else '')
        out.append(pre+f'buffer_load_dwordx4 {w(n)}, v{WOF[n//4]}, {sWS}, s45 offen offset:{1024*(n%4)} sc1')
    return out
def xload(k,tag=''):
    base,kk=(sXA,k) if k<12 else (sXO,k-12)
    x=xslot(k); out=[]
    for t in range(4):
        pre=(f's_add_u32 s46, {base}, {(kk//4)*4096}\n' if t==0 else '')
        out.append(pre+f'buffer_load_dwordx4 {x(t)}, v{XO[t]}, {sWS}, s46 offen offset:{1024*(kk%4)} sc1{tag}')
    return out
def r_loads():
    t=f's_mul_i32 s47, {sJ}, {16*KV_P}\ns_add_u32 s47, s47, {WS_KV}\n'
    for i in range(16):
        t+=f'buffer_load_dwordx4 {vr(RB+4*i)}, v{RQ}, {sWS}, s47 offen offset:{KV_P*(i&1)} sc1 ;#rl\n'
        if i&1 and i<15: t+=f's_add_u32 s47, s47, {2*KV_P}\n'
    return t
def r_test():
    a=TMP
    t=f'v_max3_u32 v{a}, v{RB}, v{RB+4}, v{RB+8}\n'
    for i in range(3,15,2): t+=f'v_max3_u32 v{a}, v{a}, v{RB+4*i}, v{RB+4*i+4}\n'
    t+=f'v_max_u32 v{a}, v{a}, v{RB+60}\nv_cmp_eq_u32 s[58:59], -1, v{a}\ns_nop 1\ns_cmp_eq_u64 s[58:59], 0'
    return t
def p2_front(p,st):
    for k in range(OPT['wpre']):
        for t in wload(k):
            p(t)
            for _ in range(2):
                if st.q: p.extend(st.q.pop(0)[1])
    flush(p,st)
    p(f'''s_lshr_b32 s47, {sTT}, 1
    s_lshl_b32 s47, s47, 7
    s_load_dwordx16 s[48:63], s[32:33], s47
    s_waitcnt lgkmcnt(0)''')
    t=''
    for i in range(50,64,2): t+=f's_and_b64 s[48:49], s[48:49], s[{i}:{i+1}]\n'
    t+='s_and_b32 s48, s48, s49\ns_bitcmp1_b32 s48, 1'
    fallbacks.append(f'''L_fb_h2:
    s_mov_b32 s3, 0
    v_and_b32 v{CPA}, 15, v0
    v_lshl_add_u32 v{CPA}, v{CPA}, 2, s47
    L_fbl_h2:
    buffer_load_dword v{CPV}, v{CPA}, {sWS}, 0 offen sc1
    s_waitcnt vmcnt(0)
    v_cmp_eq_u32 s[58:59], 3, v{CPV}
    s_nop 1
    s_cmp_eq_u64 s[58:59], -1
    s_cbranch_scc1 L_ok_h2
    s_add_u32 s3, s3, 1
    s_cmp_lt_u32 s3, {BOUND}
    s_cbranch_scc1 L_fbl_h2
    s_branch L_ok_h2''')
    p(t+'\ns_cbranch_scc0 L_fb_h2\nL_ok_h2:\n'+st_('h2ok'))
    p(r_loads())
    for k in range(OPT['wpre'],8):
        for t in wload(k): p(t)
    for k in range(8):
        for t in xload(k): p(t)
def r_work(p):
    B=RB
    p('@vmwait rl\n'+fallback('r',r_loads(),r_test())+'\n'+st_('rok'))
    n=16
    while n>1:
        n//=2
        for i in range(n):
            for k in range(4): p(f'v_add_f32 v{B+4*i+k}, v{B+4*i+k}, v{B+4*(i+n)+k}')
    p(f'''v_cvt_pk_bf16_f32 v{B+4}, v{B}, v{B+1}
    v_cvt_pk_bf16_f32 v{B+5}, v{B+2}, v{B+3}
    ds_write_b64 v{RWA}, {vr(B+4,2)}
    @wait lg
    s_barrier''')
    F=B+8; DA=B+24; DB=B+40
    for f in range(4): p(f'ds_read_b128 {vr(F+4*f)}, v{RRA} offset:{32*f}')
    p(f'''{M32} {vr(DA,16)}, {vr(F)}, {vr(QP)}, 0
    {M32} {vr(DB,16)}, {vr(F+8)}, {vr(QP+4)}, 0
    {M32} {vr(DA,16)}, {vr(F+4)}, {vr(QP+4)}, {vr(DA,16)}
    {M32} {vr(DB,16)}, {vr(F+12)}, {vr(QP+8)}, {vr(DB,16)}''')
    for n in range(5): p(f'buffer_load_dwordx2 {vr(RES+2*n,2)}, v{RESA}, {sX}, {sRO} offen offset:{32*n}')
    for D in (DA,DB):
        p(f'v_add_f32 v{D+12}, {sEPS}, v{D+12}\nv_rcp_f32 v{D+12}, v{D+12}')
    for k,D in enumerate((DA,DB)):
        for r in range(12): p(f'v_mul_f32 v{D+r}, v{D+r}, v{D+12}')
        for i in range(4): p(f'v_cvt_pk_bf16_f32 v{F+4*k+i}, v{D+2*i}, v{D+2*i+1}')
        for i in range(2): p(f'v_cvt_pk_bf16_f32 v{F+8+2*k+i}, v{D+8+2*i}, v{D+9+2*i}')
        p(f'v_min_u32 v{F+4*k}, -2, v{F+4*k}')
        p(f'buffer_store_dwordx4 {vr(F+4*k)}, v{ACTO}, {sWS}, {sOST} offen offset:{512*k} sc1 ;#o')
    p(f'''v_min_u32 v{F+8}, -2, v{F+8}
    s_mov_b32 exec_hi, 0
    buffer_store_dwordx4 {vr(F+8)}, v{ACTO}, {sWS}, {sOST} offen offset:1024 sc1 ;#o
    s_mov_b32 exec_hi, -1''')
    p(st_('rdone'))
def o_test():
    a=TMP+0; t=''
    regs=[]
    first=True
    E=100
    for k in range(12,17):
        x=xslot(k)
        for tt in range(4):
            b=int(x(tt).split('[')[1].split(':')[0])
            t+=f'v_accvgpr_read_b32 v{E+len(regs)}, a{b}\n'; regs.append(E+len(regs))
    t+=f'v_max3_u32 v{E}, v{E}, v{E+1}, v{E+2}\n'
    for i in range(3,19,2): t+=f'v_max3_u32 v{E}, v{E}, v{E+i}, v{E+i+1}\n'
    t+=f'v_max_u32 v{E}, v{E}, v{E+19}\nv_cmp_eq_u32 s[58:59], -1, v{E}\ns_nop 1\ns_cmp_eq_u64 s[58:59], 0'
    return t
def p2_main(p):
    for t in wload(8)+xload(8)+wload(9)+xload(9)+xload(10): p(t)
    st=Stream()
    def mfs(k):
        w=wslot(k); x=xslot(k)
        return [f'{M16} {vr(ACC+4*(4*n+t))}, {w(n)}, {x(t)}, {"0" if k==0 else vr(ACC+4*(4*n+t))}' for t in range(4) for n in range(5)]
    mf=[]
    after={0:wload(10)+xload(11),1:wload(11),2:wload(12),3:wload(13),4:wload(14),5:wload(15),6:wload(16)}
    ol=[t for k in range(12,17) for t in xload(k,' ;#ol')]
    after[OPT['go']]=after.get(OPT['go'],[])+ol
    for k in range(12):
        mf+=mfs(k)
        for t in after.get(k,[]): st.add(t,len(mf)-1,glue=True)
    run_pass(p,mf,[],{},[st],slots=2,vec=8)
    p(st_('actdone'))
    p('@vmwait ol\n'+fallback('o','\n'.join(ol).replace(' ;#ol',''),o_test())+'\n'+st_('ook'))
    for k in range(12,17): p('\n'.join(mfs(k)))
def p2_tail(p):
    a=196; S=100
    for t in range(4):
        p(f'''s_sub_u32 s45, {sW}, {t+1}
        s_and_b32 s45, s45, 3
        s_mul_i32 s45, s45, 5120
        s_add_u32 s45, s45, {t*4*5120}
        v_add_u32 v{a+t}, s45, v{LIN(0)}''')
    p(f'''s_mul_i32 s45, {sW}, {4*5120}
    v_add_u32 v{a+4}, s45, v{LIN(0)}''')
    p(st_('p2done'))
    for t in range(4):
        for n in range(5): p(f'ds_write_b128 v{a+t}, {vr(ACC+4*(4*n+t))} offset:{1024*n}')
    p('@wait lg\ns_barrier')
    for n in range(5):
        for u in range(4): p(f'ds_read_b128 {vr(S+20*u+4*n)}, v{a+4} offset:{5120*u+1024*n}')
    for n in range(5):
        R=S+4*n
        for k in range(2):
            p(f'v_lshlrev_b32 v{ACC+4*n+2*k}, 16, v{RES+2*n+k}\nv_and_b32 v{ACC+4*n+1+2*k}, 0xffff0000, v{RES+2*n+k}')
        for k in range(4):
            p(f'v_add_f32 v{R+k}, v{R+k}, v{R+20+k}\nv_add_f32 v{R+40+k}, v{R+40+k}, v{R+60+k}')
        for k in range(4): p(f'v_add_f32 v{R+k}, v{R+k}, v{R+40+k}')
        for k in range(4): p(f'v_add_f32 v{R+k}, v{R+k}, v{ACC+4*n+k}')
        p(f'''v_cvt_pk_bf16_f32 v{R}, v{R}, v{R+1}
        v_cvt_pk_bf16_f32 v{R+1}, v{R+2}, v{R+3}
        buffer_store_dwordx2 {vr(R,2)}, v{RESA}, {sOUT}, {sRO} offen offset:{32*n} {OPT['osc'].replace('+',' ')}''')
HDR=open('parallel_sum__linear_attn_block__dense_activation_mish__prompt.s.ref').read().split('; Override')[0]
def build(prof=False,lst=False):
    PROF['on']=prof; PROF['n']=0; PROF['names']=[]; del fallbacks[:]
    p=Prog(); p(st_('start')); startup(p)
    for s in range(4):
        for t in dma_stage(s): p(t)
    addr_p1lds(p); p(st_('issued'))
    prologue_work(p); p(st_('pst'))
    fr=w1_pass(p); bubble(p); kvq_pass(p,fr)
    st=p1_tail(p); p2_front(p,st); r_work(p); p2_main(p); p2_tail(p)
    p(st_('tail'))
    if OPT['xtest']: p(f'''s_cmp_eq_u32 s84, 0
    s_cbranch_scc1 L_xt
    s_memrealtime s[86:87]
    s_waitcnt lgkmcnt(0)
    s_add_u32 s88, s86, {OPT['xtest']}
    L_xl:
    s_memrealtime s[86:87]
    s_waitcnt lgkmcnt(0)
    s_sub_u32 s89, s86, s88
    s_cmp_lt_i32 s89, 0
    s_cbranch_scc1 L_xl
    L_xt:''')
    if OPT['spin']:
        if OPT['amp']=='drained': p('@wait vm'); p(st_('drained'))
        p('s_waitcnt lgkmcnt(0)')
        if OPT['amp']: p(f's_sub_u32 s90, s90, s84\ns_min_u32 s90, s90, 20000\ns_add_u32 s88, s84, s90\ns_add_u32 s88, s88, {OPT["spin"]}')
        else: p(f's_add_u32 s88, s84, {OPT["spin"]}')
        p('''L_xl:
        s_memrealtime s[86:87]
        s_waitcnt lgkmcnt(0)
        s_sub_u32 s89, s86, s88
        s_cmp_lt_i32 s89, 0
        s_cbranch_scc1 L_xl''')
    if prof: p('@wait vm'); p(st_('drained')); prof_flush(p,0)
    p('s_endpgm')
    lines,stats=finalize(p.items); print(len(lines),stats,file=sys.stderr)
    q=Prog()
    fb='\n'.join(fallbacks)
    lines+=['.p2align 6']
    for ln in fb.split('\n'):
        ln=ln.strip()
        if not ln: continue
        lines.append(ln)
    lines+=['L_end:','s_endpgm']
    name='k0_kernel' if lst else KN
    txt=HDR
    txt+=(f'; @launch kernel={name} grid=(256,1,1) block=(256,1,1) lds={LDS_BYTES}\n' if lst else f'; @launch grid=(256,1,1) block=(256,1,1) lds={LDS_BYTES}\n')
    txt+='.amdgcn_target "amdgcn-amd-amdhsa--gfx950"\n.text\n'+kernel_text(name,lines)
    txt+='.section .rodata,"a"\n.p2align 6\n'+descriptor(name)
    return txt
if __name__=='__main__':
    out=sys.argv[1]; prof=False
    for a in sys.argv[2:]:
        k,v=a.split('=')
        OPT[k]=v if k in('stamps','amp','osc') else int(v)
    prof=bool(OPT['stamps'])
    open(out,'w').write(build(prof,lst=bool(OPT.get('lst',0))))
    if prof: json.dump(PROF['all'],open(out+'.json','w'))
```

```python
import sys, json
from common import *
import common
from sched2 import *
OPT=dict(rot=1, sig=3, pp=7, depth=9, delay=3, maxrd=4, mc=18, kdepth=9, go=7, stamps='', wpre=8, xtest=0, osc='', spin=0, amp='')
XR=lambda g,s:1+4*g+s
W1R=lambda g:13+g
ACW=16; ACK=64; ACV=80; ACR=96; ACQ=112
SX=128; RSTD=132; RL=133; M2R=134; RSC=136; RLC=152; SWB=168; TMP=196; QP=220
LIN=lambda g:232+g
XD=(235,236); XD4=(96,97,98,99); WD=(237,238,239); ACTO=240; KVO=241; EXW=245; EXA=246; EXB=247; EXT=248
WOF=(232,249); XO=(232,250,251,252); RESA=253; SIG=254; VAL=255
NEG=2; ZER=6; A2Z=10; RQ=12; RWA=13; RRA=14
UA=64; UD=68; WCD=80
POOL=160; NP=24
ACC=16; RES=2; RB=100
sXB='s60'; sLX='s61'; sW1B='s62'; sLW='s63'; sKVB='s64'; sL6='s65'; sQB='s66'; sOST='s67'; sACT='s68'; sC1='s69'; sEPS='s70'
sT0='s71'; sKVP='s72'; sROT='s73'; sMV='s[74:75]'; sRX='s76'; sRW='s77'; sRK='s78'
sXA='s79'; sWA='s80'; sXO='s81'; sWO2='s82'; sRO='s83'
sOOB='0x40000000'
def slot(s): return s%NSLOT if s<10 else (s+1)%NSLOT
grp=lambda sl:sl//2
L_WC=0; L_EX=4*SLOT; L_A2=3*SLOT; A2P=144; L_CS=L_MISC
BOUND=200000
fallbacks=[]
def st_(name):
    if OPT['spin']:
        if name=='start': return 's_memrealtime s[84:85]\n'
        if name==OPT['amp']: return 's_memrealtime s[90:91]\n'
        return ''
    return stamp_text(name) if name in OPT['stamps'].split(',') else ''
def fallback(name, body, test):
    fallbacks.append(f'''L_fb_{name}:
    s_mov_b32 s3, 0
    L_fbl_{name}:
    {body}
    s_waitcnt vmcnt(0)
    {test}
    s_cbranch_scc1 L_ok_{name}
    s_add_u32 s3, s3, 1
    s_cmp_lt_u32 s3, {BOUND}
    s_cbranch_scc1 L_fbl_{name}
    s_branch L_ok_{name}''')
    return f'{test}\ns_cbranch_scc0 L_fb_{name}\nL_ok_{name}:'
T=200; U=16
vQ,vW1,vS,vS2=T+4,T+5,T+7,T+9
aQ,aQ2,aW,aW2=T+6,T+8,T+10,T+11
dq=[T+12,T+13,T+14]; vKC=T+15
PX=T+16
A1,A2o=U+84,U+88
def addr_first(p):
    a,b,c,d=T,T+1,T+2,T+3
    p(f'''v_lshrrev_b32 v{a}, 4, v0
    v_and_b32 v{b}, 15, v0
    v_min_u32 v{c}, 14, v{b}
    v_mul_u32_u24 v{d}, 52, v{c}
    v_lshrrev_b32 v{d}, 8, v{d}
    v_mul_u32_u24 v{vS}, 5, v{d}
    v_sub_u32 v{c}, v{c}, v{vS}
    v_add_u32 v{vS}, 1, v{d}
    v_cmp_gt_u32 vcc, 2, v{d}
    v_mul_u32_u24 v{vS}, 0x500, v{vS}
    v_cndmask_b32 v{vS}, 0, v{vS}, vcc
    v_lshl_add_u32 v{vS}, v{c}, 4, v{vS}
    v_mul_u32_u24 v{vQ}, 0xf00, v{a}
    v_add_u32 v{vQ}, v{vQ}, v{vS}
    v_min_u32 v{c}, 11, v{b}
    v_mul_u32_u24 v{vW1}, 0xc00, v{a}
    v_lshl_add_u32 v{vW1}, v{c}, 4, v{vW1}
    v_lshrrev_b32 v{a}, 5, v0
    v_and_b32 v{b}, 31, v0
    v_mul_u32_u24 v{vS}, 0x500, v{a}
    v_lshl_add_u32 v{vS2}, v{b}, 3, v{vS}
    v_lshl_add_u32 v{vS}, v{b}, 4, v{vS}''')
    p(f'''s_lshl_b32 s45, {sTI}, 4
    s_add_u32 s45, s45, {sJ}
    s_lshl_b32 s45, s45, 2
    s_add_u32 s45, s45, {sW}
    s_lshl_b32 s54, s45, 1
    s_mul_i32 s55, s54, 1280
    s_mul_i32 s45, {sTI}, 40
    s_lshl_b32 s46, {sW}, 2
    s_add_u32 s46, s46, s45
    s_mul_i32 s47, {sJ}, 80
    s_mul_i32 s48, s46, 3840
    s_add_u32 s48, s48, s47
    s_add_u32 s49, s48, {16*3840}
    s_mul_i32 s56, {sJ}, 192
    s_mul_i32 s51, s46, 3072
    s_add_u32 s51, s51, s56
    s_add_u32 s52, s51, {16*3072}
    s_min_u32 s57, {sW}, 1
    s_lshl_b32 s46, s57, 2
    s_add_u32 s46, s46, s45
    s_add_u32 s46, s46, 32
    s_mul_i32 s50, s46, 3840
    s_add_u32 s50, s50, s47
    s_mul_i32 s53, s46, 3072
    s_add_u32 s53, s53, s56
    s_lshl_b32 s57, s57, 10
    s_lshl_b32 s56, {sW}, 10''')
    c,d,e=T,T+1,T+2
    p(f'''v_lshrrev_b32 v{c}, 3, v0
    v_mul_u32_u24 v{c}, 0x500, v{c}
    v_and_b32 v{d}, 7, v0
    v_lshrrev_b32 v{e}, 4, v0
    v_xor_b32 v{d}, v{d}, v{e}
    v_lshl_add_u32 v{XD4[0]}, v{d}, 4, v{c}
    v_xor_b32 v{d}, 4, v{d}
    v_lshl_add_u32 v{XD4[1]}, v{d}, 4, v{c}
    v_add_u32 v{XD4[2]}, {16*1280-2048}, v{XD4[0]}
    v_add_u32 v{XD4[3]}, {24*1280-3072}, v{XD4[1]}
    v_add_u32 v{XD4[1]}, {8*1280-1024}, v{XD4[1]}''')
    for n in range(3):
        p(f'''v_add_u32 v{c}, {64*n}, v0
        v_mul_u32_u24 v{d}, 0xaab, v{c}
        v_lshrrev_b32 v{d}, 15, v{d}
        v_mul_u32_u24 v{e}, 12, v{d}
        v_sub_u32 v{c}, v{c}, v{e}
        v_mul_u32_u24 v{d}, 0xc00, v{d}
        v_lshl_add_u32 v{WD[n]}, v{c}, 4, v{d}''')
        if n: p(f'v_subrev_u32 v{WD[n]}, {1024*n}, v{WD[n]}')
    p(f'''s_lshl_b32 s45, {sTI}, 2
    s_add_u32 s45, s45, {sW}
    s_lshl_b32 {sT0}, s45, 5
    s_mul_i32 {sXB}, {sT0}, 1280
    s_lshl_b32 {sLX}, {sW}, 12
    s_mul_i32 s46, {sW}, {16*3072}
    s_mul_i32 s47, {sJ}, 192
    s_add_u32 {sW1B}, s46, s47
    s_mul_i32 {sLW}, {sW}, 3072
    s_add_u32 {sLW}, {sLW}, 16384
    v_lshlrev_b32 v{LIN(0)}, 4, v0''')
    if OPT['rot']:
        p(f'''s_and_b32 s45, {sTI}, 7
        s_and_b32 s46, {sJ}, 3
        s_mul_i32 s46, s46, 5
        s_lshr_b32 s46, s46, 1
        s_add_u32 s45, s45, s46
        s_cmp_ge_u32 s45, 10
        s_cselect_b32 s46, 10, 0
        s_sub_u32 {sROT}, s45, s46''')
def addr_prol(p):
    a,b,c,d,e,f_=T,T+1,T+2,T+3,U,U+1
    p(f'''v_bfe_u32 v{a}, v0, 4, 1
    v_bfe_u32 v{b}, v0, 1, 1
    v_lshl_add_u32 v{a}, v{a}, 1, v{b}
    v_bfe_u32 v{b}, v0, 2, 2
    v_and_b32 v{c}, 1, v0
    v_lshlrev_b32 v{c}, 3, v{c}
    v_lshl_add_u32 v{b}, v{b}, 8, v{c}
    v_lshrrev_b32 v{d}, 5, v0
    s_cmp_eq_u32 {sW}, 2
    s_cselect_b32 s45, 5, 1
    s_mul_i32 s46, {sW}, 5
    s_cmp_eq_u32 {sW}, 3
    s_cselect_b32 s46, 10, s46
    s_cmp_eq_u32 {sW}, 2
    s_cselect_b32 s46, 4, s46
    s_min_u32 s47, {sW}, 2
    s_lshl_b32 s47, s47, 2
    v_mov_b32 v{e}, s46
    v_mad_u32_u24 v{e}, v{a}, s45, v{e}
    v_min_u32 v{e}, 15, v{e}
    v_lshl_add_u32 v{aQ2}, v{e}, 4, v{b}
    v_add_u32 v{aQ2}, {L_PB}, v{aQ2}
    v_lshl_add_u32 v{aQ}, v{d}, 11, v{aQ2}
    v_add_u32 v{e}, s47, v{a}
    v_lshl_add_u32 v{aW2}, v{e}, 4, v{b}
    v_add_u32 v{aW2}, {L_PB+10240}, v{aW2}
    v_lshl_add_u32 v{aW}, v{d}, 11, v{aW2}
    v_mov_b32 v{e}, 0x3f803f80
    v_cmp_gt_u32 vcc, 32, v0
    v_mov_b32 v{f_}, 0''')
    for i in range(4): p(f'v_mov_b32 v{A1+i}, v{e}\nv_cndmask_b32 v{A2o+i}, v{f_}, v{e}, vcc')
    p(f'''s_mul_i32 s45, {sTI}, 5
    s_movk_i32 s46, 3072
    s_cmp_eq_u32 {sW}, 3
    s_cselect_b32 s46, 1024, s46
    v_and_b32 v{c}, 31, v0
    v_lshlrev_b32 v{c}, 4, v{c}''')
    for n in range(3):
        p(f'''v_add_u32 v{a}, s45, v{d}
        v_add_u32 v{a}, {2*n}, v{a}
        v_and_b32 v{b}, 1, v{a}
        v_lshrrev_b32 v{a}, 1, v{a}
        v_lshl_add_u32 v{b}, v{b}, 9, v{c}
        v_mad_u32_u24 v{dq[n]}, v{a}, s46, v{b}''')
    p(f'''s_lshl_b32 s45, {sW}, 10
    v_add_u32 v{vKC}, s45, v{LIN(0)}
    v_mov_b32 v{a}, {sOOB}
    v_cmp_gt_u32 vcc, 3584, v{vKC}
    s_lshl_b32 s45, {sJ}, 4
    s_add_u32 s45, s45, {sTI}
    v_cndmask_b32 v{vKC}, v{a}, v{vKC}, vcc
    s_mul_i32 s45, s45, {KV_P}
    s_add_u32 {sKVP}, s45, {WS_KV}
    s_mul_i32 s46, {sJ}, {WQ_J}
    s_add_u32 {sKVB}, s46, {WS_WQ}
    s_add_u32 {sQB}, {sKVB}, {WQ_QOFF}''')
def addr_p1lds(p):
    a,b,c,d=T,T+1,T+2,T+3
    p(f'''v_and_b32 v{a}, 31, v0
    v_lshrrev_b32 v{b}, 5, v0
    v_bfe_u32 v{c}, v0, 1, 3
    v_xor_b32 v{c}, v{c}, v{b}
    v_lshlrev_b32 v{c}, 4, v{c}
    v_lshl_add_u32 v{c}, v{a}, 7, v{c}
    v_add_u32 v{c}, {sLX}, v{c}''')
    for s in range(4):
        p(f'v_xor_b32 v{XR(0,s)}, {32*s}, v{c}')
        p(f'v_add_u32 v{XR(1,s)}, {2*SLOT}, v{XR(0,s)}\nv_add_u32 v{XR(2,s)}, {4*SLOT}, v{XR(0,s)}')
    p(f'''v_bfe_u32 v{c}, v0, 2, 2
    v_lshl_add_u32 v{c}, v{b}, 3, v{c}
    v_mul_u32_u24 v{c}, 192, v{c}
    v_bfe_u32 v{d}, v0, 4, 1
    v_lshl_add_u32 v{c}, v{d}, 5, v{c}
    v_and_b32 v{d}, 3, v0
    v_lshl_add_u32 v{W1R(0)}, v{d}, 3, v{c}
    v_add_u32 v{W1R(1)}, {2*SLOT}, v{W1R(0)}
    v_add_u32 v{W1R(2)}, {4*SLOT}, v{W1R(0)}
    v_add_u32 v{LIN(1)}, {2*SLOT}, v{LIN(0)}
    v_add_u32 v{LIN(2)}, {4*SLOT}, v{LIN(0)}''')
    p(f'''s_lshl_b32 s45, {sTI}, 5
    s_add_u32 s45, s45, {sJ}
    s_lshl_b32 s45, s45, 2
    s_lshl_b32 s46, {sJ}, 5
    s_add_u32 s46, s46, {sTI}
    s_lshl_b32 s46, s46, 2
    s_add_u32 s46, s46, 2048
    s_cmp_eq_u32 {sW}, 0
    s_cselect_b32 s45, s45, {sOOB}
    s_cselect_b32 s46, s46, {sOOB}
    v_mov_b32 v{SIG}, {sOOB}
    v_writelane_b32 v{SIG}, s45, 0
    v_writelane_b32 v{SIG}, s46, 1
    v_mov_b32 v{VAL}, 1''')
    if OPT['xtest']: p(f's_getreg_b32 s45, hwreg(HW_REG_XCC_ID, 0, 4)\ns_lshl_b32 s45, s45, 8\ns_or_b32 s45, s45, 1\nv_mov_b32 v{VAL}, s45')
def startup(p):
    tab={'x':(4,0,2048*1280),'wq':(8,8,640*3840),'w1':(16,32,640*3072),'ws':(32,72,common.WS_END),'dbg':(36,64,256),
         'wo':(12,16,640*1280),'b1':(20,40,3072),'w2':(24,48,1536*1280),'out':(28,56,2048*1280)}
    p('s_cmp_ge_u32 s2, 256\ns_cbranch_scc1 L_end')
    for n,(r,o,sz) in tab.items(): p(f's_load_dwordx2 s[{r}:{r+1}], s[0:1], {o}')
    p(f'''v_lshrrev_b32 v1, 6, v0
    v_and_b32 v0, 63, v0
    v_readfirstlane_b32 {sW}, v1
    s_and_b32 s45, s2, 7
    s_lshr_b32 s46, s2, 3
    s_and_b32 s47, s45, 1
    s_lshl_b32 s50, s47, 3
    s_and_b32 s48, s46, 7
    s_add_u32 {sTI}, s50, s48
    s_lshr_b32 s49, s45, 1
    s_lshl_b32 s50, s49, 2
    s_lshr_b32 s51, s46, 3
    s_add_u32 {sJ}, s50, s51
    s_lshl_b32 s50, s49, 3
    s_add_u32 {sTT}, s50, s48
    s_lshl_b32 s50, s47, 2
    s_add_u32 {sC}, s50, s51''')
    for n,(r,o,sz) in tab.items(): p(f's_mov_b32 s{r+2}, {sz}\ns_mov_b32 s{r+3}, 0x20000')
    addr_first(p); addr_prol(p)
    p('@wait lg')
    p(st_('karg'))
    p(f'''s_lshl_b32 s45, s2, 2
    s_or_b32 s58, s45, {sW}
    s_cmp_eq_u32 s58, 0
    s_cbranch_scc0 L_nz
    v_mov_b32 v{U}, 0
    v_mov_b32 v{U+1}, 0
    v_mov_b32 v{U+2}, 0
    v_mov_b32 v{U+3}, 0''')
    for i in range(4): p(f'buffer_store_dwordx4 {vr(U)}, v{LIN(0)}, {sWS}, 0 offen offset:{1024*i} sc1 ;#nocount')
    p(f's_movk_i32 s45, 4096\nbuffer_store_dwordx4 {vr(U)}, v{LIN(0)}, {sWS}, s45 offen sc1 ;#nocount\nL_nz:')
    p(f'''buffer_load_dwordx4 {vr(PX)}, v{vS}, {sX}, s55 offen
    buffer_load_dwordx4 {vr(PX+4)}, v{vS}, {sX}, s55 offen offset:512
    buffer_load_dwordx2 {vr(PX+8,2)}, v{vS2}, {sX}, s55 offen offset:1024''')
    for n in range(3):
        m0=f's_add_u32 m0, s56, {L_PB+4096*n}' if n<2 else f's_add_u32 m0, s57, {L_PB+8192}'
        m1=f's_add_u32 m0, s56, {L_PB+10240+4096*n}' if n<2 else f's_add_u32 m0, s57, {L_PB+10240+8192}'
        p(f'''{m0}
        buffer_load_dwordx4 v{vQ}, {sWQ}, s{48+n} offen lds ;#pl
        {m1}
        buffer_load_dwordx4 v{vW1}, {sW1}, s{51+n} offen lds ;#pl''')
def dma_stage(s,part=None):
    out=dma_stage_(s)
    k=[i for i,t in enumerate(out) if 'buffer_' in t][0]
    return out if part is None else (out[:k] if part=='pre' else out[k:])
def dma_stage_(s):
    SB=slot(s)*SLOT; out=[]
    R=OPT['rot']
    if s<10:
        if R: out.append(f's_add_u32 s46, {sROT}, {s}\ns_cmp_ge_u32 s46, 10\ns_cselect_b32 s47, 10, 0\ns_sub_u32 s46, s46, s47\ns_lshl_b32 {sRX}, s46, 7\ns_add_u32 {sRX}, {sRX}, {sXB}')
        if R: out.append(f's_mul_i32 {sRW}, s46, {64*3072}\ns_add_u32 {sRW}, {sRW}, {sW1B}')
        else: out.append(f's_add_u32 {sRW}, {sW1B}, {s*64*3072}')
        if not R: out.append(f's_add_u32 {sRX}, {sXB}, {128*s}')
        out.append(f's_add_u32 m0, {sLX}, {SB}')
        for i in range(4):
            out.append(f'buffer_load_dwordx4 v{XD4[i]}, {sX}, {sRX} offen offset:{1024*i} lds ;#st{s}')
        out[-1]+=f'\ns_add_u32 m0, {sLW}, {SB}'
        for n in range(3):
            out.append(f'buffer_load_dwordx4 v{WD[n]}, {sW1}, {sRW} offen offset:{1024*n} lds ;#st{s}')
    elif s<15:
        if R: out.append(f's_lshl_b32 s46, {sROT}, 1\ns_add_u32 s46, s46, {sW}\ns_add_u32 s46, s46, {4*(s-10)}\ns_cmp_ge_u32 s46, 20\ns_cselect_b32 s47, 20, 0\ns_sub_u32 s46, s46, s47')
        if R: out.append(f's_mul_i32 s46, s46, 6144\ns_add_u32 {sRK}, s46, {sKVB}')
        else: out.append(f's_add_u32 {sRK}, {sL6}, {sKVB}\ns_add_u32 {sRK}, {sRK}, {4*(s-10)*6144}')
        for n in range(6):
            pre=''
            if n==0: pre=f's_add_u32 m0, {sL6}, {SB}\n'
            if n==4: pre=f's_add_u32 m0, {sL6}, {SB+4096}\ns_add_u32 {sRK}, {sRK}, 4096\n'
            out.append(pre+f'buffer_load_dwordx4 v{LIN(0)}, {sWS}, {sRK} offen offset:{1024*(n%4)} sc1 lds ;#st{s}')
    else:
        if s<17:
            if R: out.append(f's_add_u32 s46, {sROT}, {sW}\ns_add_u32 s46, s46, {4*(s-15)}\ns_cmp_ge_u32 s46, 10\ns_cselect_b32 s47, 10, 0\ns_sub_u32 s46, s46, s47\ns_lshl_b32 s46, s46, 12')
            else: out.append(f's_add_u32 s46, {sLX}, {4*(s-15)*4096}')
            out.append(f's_add_u32 {sRK}, s46, {sQB}\ns_add_u32 m0, {sLX}, {SB}')
            cnt=4
        else:
            if R: out.append(f's_lshl_b32 s46, {sROT}, 1\ns_add_u32 s46, s46, {sW}\ns_add_u32 s46, s46, 16\ns_cmp_ge_u32 s46, 20\ns_cselect_b32 s47, 20, 0\ns_sub_u32 s46, s46, s47')
            else: out.append(f's_add_u32 s46, {sW}, 16')
            out.append(f's_lshl_b32 s46, s46, 11\ns_add_u32 {sRK}, s46, {sQB}\ns_lshl_b32 s46, {sW}, 11\ns_add_u32 m0, s46, {SB}')
            cnt=2
        for n in range(cnt):
            out.append(f'buffer_load_dwordx4 v{LIN(0)}, {sWS}, {sRK} offen offset:{1024*n} sc1 lds ;#st{s}')
    return out
def prologue_work(p):
    a,b,c,d,e,f_=T,T+1,T+2,T+3,U+92,U+93
    D1,D2=U+48,U+64
    Y=U
    for i in range(10):
        p(f'v_lshlrev_b32 v{Y+2*i}, 16, v{PX+i}\nv_and_b32 v{Y+2*i+1}, 0xffff0000, v{PX+i}')
        if i==0:
            p(f'''s_cmp_eq_u32 s58, 0
            s_cbranch_scc0 L_nz2
            v_mov_b32 v{a}, 0
            v_mov_b32 v{b}, 1
            buffer_store_dword v{b}, v{a}, {sDBG}, 0 offen sc1 ;#nocount
            L_nz2:''')
    def red32(r,t):
        for k in (8,4,2,1): p(f'v_add_f32_dpp v{r}, v{r}, v{r} row_ror:{k} row_mask:0xf bank_mask:0xf')
        p(f'v_mov_b32 v{t}, v{r}\nv_permlane16_swap_b32 v{r}, v{t}\nv_add_f32 v{r}, v{r}, v{t}')
    p(f'v_add_f32 v{a}, v{Y}, v{Y+1}\nv_add_f32 v{b}, v{Y+2}, v{Y+3}')
    for i in range(4,20,2): p(f'v_add_f32 v{a}, v{a}, v{Y+i}\nv_add_f32 v{b}, v{b}, v{Y+i+1}')
    p(f'v_add_f32 v{a}, v{a}, v{b}')
    red32(a,b)
    p(f'v_mul_f32 v{a}, {f32(-1.0/640)}, v{a}')
    for i in range(20): p(f'v_add_f32 v{Y+i}, v{Y+i}, v{a}')
    p(f'v_mul_f32 v{b}, v{Y}, v{Y}\nv_mul_f32 v{c}, v{Y+1}, v{Y+1}')
    for i in range(2,20,2): p(f'v_fmac_f32 v{b}, v{Y+i}, v{Y+i}\nv_fmac_f32 v{c}, v{Y+i+1}, v{Y+i+1}')
    p(f'v_add_f32 v{b}, v{b}, v{c}')
    red32(b,c)
    p('@vmwait pl\ns_barrier')
    F0=U+24
    for n in range(3):
        F=F0+8*n
        p(f'''ds_read_b64_tr_b16 {vr(F,2)}, v{aQ if n<2 else aQ2} offset:{4096*n} ;#pro
        ds_read_b64_tr_b16 {vr(F+2,2)}, v{aQ if n<2 else aQ2} offset:{4096*n+1024} ;#pro
        ds_read_b64_tr_b16 {vr(F+4,2)}, v{aW if n<2 else aW2} offset:{4096*n} ;#pro
        ds_read_b64_tr_b16 {vr(F+6,2)}, v{aW if n<2 else aW2} offset:{4096*n+1024} ;#pro''')
    R=U+20
    p(f'''v_mov_b32 v{c}, {f32(1e-5)}
    v_fmac_f32 v{c}, {f32(1.0/640)}, v{b}
    v_rsq_f32 v{e}, v{c}
    v_lshrrev_b32 v{d}, 5, v0
    v_add_u32 v{d}, s54, v{d}
    v_lshlrev_b32 v{U+94}, 4, v{d}
    v_lshlrev_b32 v{U+95}, 2, v{d}
    v_mul_f32 v{b}, v{c}, v{e}
    v_cvt_pk_bf16_f32 v{R+1}, v{a}, v{b}
    v_mov_b32 v{R+3}, v{e}
    v_lshlrev_b32 v{c}, 16, v{R+1}
    v_and_b32 v{d}, 0xffff0000, v{R+1}
    v_sub_f32 v{c}, v{a}, v{c}
    v_sub_f32 v{d}, v{b}, v{d}
    v_cvt_pk_bf16_f32 v{R}, v{a}, v{c}
    v_mov_b32 v{f_}, 0
    v_cvt_pk_bf16_f32 v{R+2}, v{d}, v{f_}
    s_cmp_eq_u32 {sW}, 2
    s_cselect_b32 s56, 0xff000000, 0
    s_mov_b32 s57, s56
    s_lshl_b32 s48, {sW}, 10
    s_cmp_eq_u32 {sW}, 3
    s_cselect_b32 s48, {WQ_QOFF}, s48
    s_add_u32 s55, s48, {sKVB}
    s_mov_b32 s48, {WS_ST}
    s_mov_b32 s49, {WS_RS}''')
    for n in range(3):
        F=F0+8*n
        for i in range(4): p(f'v_cndmask_b32 v{F+i}, v{F+i}, v{f_}, s[56:57]')
        A=A1 if n<2 else A2o
        if n==2: p('s_mov_b32 exec_hi, 0')
        p(f'buffer_store_dwordx4 {vr(F)}, v{dq[n]}, {sWS}, s55 offen sc1 ;#pst')
        if n==2: p('s_mov_b32 exec_hi, -1')
        p(f'{M32} {vr(D1,16)}, {vr(A)}, {vr(F)}, {"0" if n==0 else vr(D1,16)}')
        p(f'{M32} {vr(D2,16)}, {vr(A)}, {vr(F+4)}, {"0" if n==0 else vr(D2,16)}')
    p(f'''s_mov_b32 exec_lo, 1
    s_mov_b32 exec_hi, 1
    buffer_store_dwordx4 {vr(R)}, v{U+94}, {sWS}, s48 offen sc1 ;#pst
    buffer_store_dword v{R+3}, v{U+95}, {sWS}, s49 offen sc1 ;#pst
    s_mov_b64 exec, -1
    v_mov_b32 v{U}, -1
    v_mov_b32 v{U+1}, -1
    v_mov_b32 v{U+2}, -1
    v_mov_b32 v{U+3}, -1
    buffer_store_dwordx4 {vr(U)}, v{vKC}, {sWS}, {sKVP} offen sc1 ;#pst
    s_lshl_b32 s45, {sJ}, 4
    s_add_u32 s45, s45, {sTI}
    s_mul_i32 s45, s45, {CS_P}
    s_add_u32 s45, s45, {WS_CS}
    s_lshl_b32 s46, {sW}, 7
    s_add_u32 s46, s46, s45
    s_add_u32 s46, s46, 384
    s_min_u32 s47, {sW}, 2
    s_lshl_b32 s47, s47, 7
    s_add_u32 s47, s47, s45
    v_lshlrev_b32 v{a}, 2, v0
    v_mov_b32 v{b}, 0
    s_mov_b32 exec_hi, 0
    buffer_store_dword v{D1}, v{a}, {sWS}, s46 offen sc1 ;#pst
    buffer_store_dword v{D2}, v{a}, {sWS}, s47 offen sc1 ;#pst
    s_mov_b32 exec_hi, -1
    buffer_load_dword v{TMP+23}, v{b}, {sDBG}, 0 offen sc1 ;#dbg''')
def addr_wc(st):
    a,b,c,d,e,f_=TMP,TMP+1,TMP+2,TMP+3,TMP+4,TMP+5
    vC=UD+4
    st.add(f'''v_lshrrev_b32 v{a}, 4, v0
    v_and_b32 v{b}, 15, v0
    v_min_u32 v{c}, 9, v{b}
    v_mul_u32_u24 v{vC}, 0x500, v{a}
    v_lshl_add_u32 v{vC}, v{c}, 4, v{vC}
    s_lshl_b32 s48, {sW}, 2
    v_add_u32 v{a}, s48, v{a}
    v_bfe_u32 v{e}, v0, 2, 2
    v_and_b32 v{f_}, 3, v0
    v_lshlrev_b32 v{f_}, 3, v{f_}
    v_lshl_add_u32 v{e}, v{e}, 8, v{f_}
    v_lshlrev_b32 v{f_}, 4, v{b}
    s_mul_i32 s49, {sTT}, 6
    s_lshr_b32 s50, {sTT}, 1
    s_mul_i32 s50, s50, 5
    s_add_u32 s50, s50, 192
    s_movk_i32 s51, 5120''')
    for n in range(4):
        wo=n>=2
        st.add(f'''v_add_u32 v{b}, {16*(n&1)}, v{a}
        v_min_u32 v{b}, {24 if wo else 29}, v{b}
        v_mul_u32_u24 v{c}, 52, v{b}
        v_lshrrev_b32 v{c}, 8, v{c}
        v_mul_u32_u24 v{d}, 5, v{c}
        v_sub_u32 v{b}, v{b}, v{d}
        v_lshrrev_b32 v{d}, 1, v{c}
        v_lshlrev_b32 v{UA+n}, 12, v{d}
        v_and_b32 v{d}, 1, v{c}
        v_lshl_add_u32 v{UA+n}, v{d}, 10, v{UA+n}
        v_lshl_add_u32 v{UA+n}, v{b}, 5, v{UA+n}
        v_add_u32 v{UA+n}, v{e}, v{UA+n}
        v_add_u32 v{c}, {'s50' if wo else 's49'}, v{c}
        v_lshrrev_b32 v{d}, 2, v{c}
        v_and_b32 v{c}, 3, v{c}
        v_lshl_add_u32 v{c}, v{c}, 8, v{f_}
        v_lshl_add_u32 v{c}, v{b}, 10, v{c}
        v_mad_u32_u24 v{UD+n}, v{d}, s51, v{c}''')
def wc_loads():
    vC=UD+4; out=[]
    out.append(f's_mul_i32 s46, {sTT}, 48\ns_lshl_b32 s47, {sW}, 2\ns_add_u32 s46, s46, s47\ns_mul_i32 s46, s46, 1280\ns_mul_i32 s47, {sC}, 160\ns_add_u32 {sRW}, s46, s47')
    out.append(f's_lshl_b32 {sRX}, {sW}, 10')
    for n in range(3):
        out.append(f's_add_u32 m0, {sRX}, {L_WC+4096*n}\ns_add_u32 s45, {sRW}, {16*1280*n}\nbuffer_load_dwordx4 v{vC}, {sW2}, s45 offen lds ;#wcl')
    out.append(f's_lshr_b32 s46, {sTT}, 1\ns_mul_i32 s46, s46, {40*1280}\ns_mul_i32 s47, {sC}, 160\ns_add_u32 {sRW}, s46, s47')
    for n in range(3,6):
        if n==3: a=f's_mul_i32 s46, {sW}, {4*1280}'
        elif n==4: a=f's_mul_i32 s46, {sW}, {4*1280}\ns_add_u32 s46, s46, {20*1280}'
        else: a=f's_lshr_b32 s46, {sW}, 1\ns_mul_i32 s46, s46, {20*1280}\ns_add_u32 s46, s46, {16*1280}'
        out.append(f'{a}\ns_add_u32 s45, {sRW}, s46\ns_add_u32 m0, {sRX}, {L_WC+4096*n}\nbuffer_load_dwordx4 v{vC}, {sWO}, s45 offen lds ;#wcl')
    return out
def wc_work(p):
    p('@vmwait wcl\ns_barrier')
    for n in range(4):
        F=WCD+4*n; o=L_WC+(48*256 if n>=2 else 0)
        p(f'ds_read_b64_tr_b16 {vr(F,2)}, v{UA+n} offset:{o}\nds_read_b64_tr_b16 {vr(F+2,2)}, v{UA+n} offset:{o+2048}')
    p(f's_mul_i32 s48, {sC}, {WC_C}\ns_add_u32 s48, s48, {WS_WC}')
    return [f'buffer_store_dwordx4 {vr(WCD+4*n)}, v{UD+n}, {sWS}, s48 offen sc1 ;#wcst' for n in range(4)]
def addr_kv(st):
    a,b,c,d,e=TMP,TMP+1,TMP+2,TMP+3,TMP+4
    st.add(f'''v_and_b32 v{a}, 31, v0
    v_lshrrev_b32 v{b}, 5, v0
    s_mul_i32 {sL6}, {sW}, 6144
    s_lshl_b32 s48, {sTI}, 2
    s_add_u32 s48, s48, {sW}
    s_lshl_b32 s48, s48, 1
    s_mul_i32 s48, s48, {X_T}
    s_add_u32 s48, s48, {WS_X}
    s_mul_i32 s49, {sJ}, 3072
    s_add_u32 {sACT}, s48, s49
    s_mul_i32 s49, {sJ}, 1280
    s_add_u32 s48, s48, {192*256}
    s_add_u32 {sOST}, s48, s49
    s_mov_b32 {sC1}, {f32(1.000001)}
    s_mov_b32 {sEPS}, {f32(1e-6)}
    s_mov_b32 s74, 0xff00ff00
    s_mov_b32 s75, 0xff00ff00
    v_bfe_u32 v{c}, v0, 4, 1
    v_mul_u32_u24 v{c}, {X_T}, v{c}
    v_lshl_add_u32 v{c}, v{b}, 8, v{c}
    v_and_b32 v{d}, 15, v0
    v_lshl_add_u32 v{ACTO}, v{d}, 4, v{c}
    s_add_u32 s48, {sL6}, {L_EX}
    v_add_u32 v{EXW}, s48, v{LIN(0)}
    s_lshr_b32 s49, {sW}, 1
    s_lshl_b32 s49, s49, 12
    s_add_u32 s49, s49, {L_EX}
    v_add_u32 v{EXA}, s49, v{LIN(0)}
    s_and_b32 s49, {sW}, 1
    s_lshl_b32 s49, s49, 11
    s_add_u32 s49, s49, {L_EX+2048}
    v_add_u32 v{EXB}, s49, v{LIN(0)}
    v_bfe_u32 v{c}, v0, 2, 2
    v_and_b32 v{d}, 1, v0
    v_lshl_add_u32 v{c}, v{d}, 5, v{c}
    v_lshlrev_b32 v{c}, 4, v{c}
    v_bfe_u32 v{d}, v0, 1, 1
    v_lshl_add_u32 v{c}, v{d}, 3, v{c}
    v_bfe_u32 v{d}, v0, 4, 1
    v_lshl_add_u32 v{c}, v{d}, 10, v{c}
    s_add_u32 s48, s48, {4096+256}
    v_add_u32 v{EXT}, s48, v{c}''')
    eg,vb,zz=TMP+5,TMP+6,TMP+7
    st.add(f'''s_and_b32 s56, {sW}, 1
    s_mul_i32 s57, s56, 24
    v_add_u32 v{eg}, s57, v{a}''')
    st.add(f'''s_cmp_eq_u32 s56, 1
    s_cselect_b32 s48, 0x0100ff00, -1
    s_cselect_b32 s50, 0x01000000, 0''',glue=True)
    st.add(f'''s_mov_b32 s49, s48
    s_mov_b32 s51, s50
    s_lshr_b32 s56, {sW}, 1
    v_cmp_le_u32 s[52:53], 20, v{eg}
    v_mov_b32 v{zz}, {sOOB}
    v_mov_b32 v{vb}, 20''')
    for q in range(4):
        st.add(f'''v_lshlrev_b32 v{c}, 2, v{b}
        s_lshl_b32 s57, s56, 5
        s_add_u32 s57, s57, {8*q}
        v_add_u32 v{c}, s57, v{c}
        v_cmp_le_u32 vcc, 20, v{c}
        v_cndmask_b32 v{d}, 0, v{vb}, vcc
        v_sub_u32 v{c}, v{c}, v{d}
        v_sub_u32 v{e}, v{eg}, v{d}
        v_cndmask_b32 v{e}, v{e}, v{vb}, s[50:51]
        v_lshrrev_b32 v{d}, 2, v{d}
        v_mul_u32_u24 v{d}, 336, v{d}
        v_mul_u32_u24 v{e}, 80, v{e}
        v_lshl_add_u32 v{c}, v{c}, 2, v{d}
        v_add_u32 v{c}, v{c}, v{e}
        s_xnor_b64 s[54:55], vcc, s[52:53]
        s_or_b64 s[54:55], s[54:55], s[50:51]
        s_and_b64 s[54:55], s[54:55], s[48:49]''')
        if q>0: st.add(f's_cmp_eq_u32 s56, 0\ns_cselect_b64 s[54:55], s[54:55], 0',glue=True)
        st.add(f'v_cndmask_b32 v{KVO+q}, v{zz}, v{c}, s[54:55]')
def addr_p2(st):
    a,b=TMP,TMP+1
    st.add(f'''v_add_u32 v{WOF[1]}, 4096, v{LIN(0)}
    v_add_u32 v{XO[1]}, {X_T}, v{LIN(0)}
    v_add_u32 v{XO[2]}, {2*X_T}, v{LIN(0)}
    v_add_u32 v{XO[3]}, {3*X_T}, v{LIN(0)}
    s_mul_i32 s48, {sTT}, {4*X_T}
    s_add_u32 s48, s48, {WS_X}
    s_mul_i32 s49, {sC}, {WC_C}
    s_add_u32 s49, s49, {WS_WC}
    s_mul_i32 s50, {sW}, {12*1024}
    s_add_u32 {sXA}, s48, s50
    s_mul_i32 s50, {sW}, {12*5120}
    s_add_u32 {sWA}, s49, s50
    s_mul_i32 s50, {sW}, {5*1024}
    s_add_u32 s48, s48, {48*1024}
    s_add_u32 {sXO}, s48, s50
    s_mul_i32 s50, {sW}, {5*5120}
    s_add_u32 s49, s49, {48*5120}
    s_add_u32 {sWO2}, s49, s50
    s_lshl_b32 s48, {sTT}, 2
    s_add_u32 s48, s48, {sW}
    s_mul_i32 s48, s48, {16*1280}
    s_mul_i32 s49, {sC}, 160
    s_add_u32 {sRO}, s48, s49
    v_and_b32 v{a}, 15, v0
    v_mul_u32_u24 v{a}, 0x500, v{a}
    v_lshrrev_b32 v{b}, 4, v0
    v_lshl_add_u32 v{RESA}, v{b}, 3, v{a}''')
POLL1A=TMP+20; POLL1=TMP+21
def poll1_addr():
    a=POLL1A
    return f'''s_lshl_b32 s58, {sTI}, 7
    s_lshl_b32 s59, {sJ}, 7
    s_add_u32 s59, s59, 2048
    v_and_b32 v{a}, 15, v0
    v_lshlrev_b32 v{a}, 2, v{a}
    v_add_u32 v{POLL1}, s59, v{a}
    v_add_u32 v{a}, s58, v{a}
    s_mov_b32 s58, 0xffff0000
    s_mov_b32 s59, 0xffff0000
    v_cndmask_b32 v{a}, v{a}, v{POLL1}, s[58:59]'''
def addr_r(p):
    a,b,c,d=96,97,98,99
    tab=[0,2,1,3,4,10,9,11,12,13]; val=sum(v<<(4*i) for i,v in enumerate(tab))
    p(f'''s_lshl_b32 s48, {sW}, 6
    v_add_u32 v{a}, s48, v0
    v_min_u32 v{a}, 209, v{a}
    v_lshlrev_b32 v{RQ}, 4, v{a}
    v_mul_u32_u24 v{b}, 0x3334, v{a}
    v_lshrrev_b32 v{b}, 16, v{b}
    v_mul_u32_u24 v{c}, 5, v{b}
    v_sub_u32 v{c}, v{a}, v{c}
    v_cmp_le_u32 vcc, 21, v{b}
    v_cndmask_b32 v{d}, 0, 1, vcc
    v_mul_u32_u24 v{a}, 21, v{d}
    v_sub_u32 v{b}, v{b}, v{a}
    v_mul_u32_u24 v{d}, 5, v{d}
    v_add_u32 v{c}, v{c}, v{d}
    v_lshlrev_b32 v{c}, 2, v{c}
    s_mov_b32 s48, {val&0xffffffff}
    s_mov_b32 s49, {val>>32}
    v_lshrrev_b64 v[100:101], v{c}, s[48:49]
    v_and_b32 v{c}, 15, v100
    v_mul_u32_u24 v{b}, {A2P}, v{b}
    v_lshl_add_u32 v{b}, v{c}, 3, v{b}
    v_add_u32 v{RWA}, {L_A2}, v{b}
    v_and_b32 v{a}, 31, v0
    v_min_u32 v{a}, 20, v{a}
    v_mul_u32_u24 v{a}, {A2P}, v{a}
    v_lshrrev_b32 v{c}, 5, v0
    v_lshl_add_u32 v{a}, v{c}, 4, v{a}
    v_add_u32 v{RRA}, {L_A2}, v{a}
    s_lshl_b32 s48, {sW}, 10
    s_add_u32 s48, s48, {L_A2}
    v_add_u32 v{A2Z}, s48, v{LIN(0)}''')
    for i in range(4): p(f'v_mov_b32 v{NEG+i}, -1\nv_mov_b32 v{ZER+i}, 0')
CSA=TMP+2; BIA=TMP+20
def stats_issue():
    a,b=TMP,TMP+1
    t=f'''v_min_u32 v{b}, 55, v0
    v_lshlrev_b32 v{CSA}, 4, v{b}
    s_lshl_b32 s45, {sJ}, 2
    s_add_u32 s45, s45, {sW}
    s_mul_i32 s45, s45, {4*CS_P}
    s_add_u32 s45, s45, {WS_CS}
    '''
    for i in range(4): t+=f'buffer_load_dwordx4 {vr(TMP+4+4*i)}, v{CSA}, {sWS}, s45 offen offset:{CS_P*i} sc1\n'
    t+=f'''v_and_b32 v{a}, 31, v0
    v_lshlrev_b32 v{b}, 4, v{a}
    s_lshl_b32 s45, {sT0}, 4
    s_add_u32 s45, s45, {WS_ST}
    buffer_load_dwordx4 {vr(SX)}, v{b}, {sWS}, s45 offen sc1
    v_lshrrev_b32 v{b}, 5, v0
    v_lshlrev_b32 v{b}, 4, v{b}
    s_lshl_b32 s45, {sT0}, 2
    s_add_u32 s45, s45, {WS_RS}
    '''
    for q in range(4): t+=f'buffer_load_dwordx4 {vr(RSC+4*q)}, v{b}, {sWS}, s45 offen offset:{32*q} sc1\n'
    t+=f'v_lshlrev_b32 v{a}, 1, v{a}\ns_mul_i32 s45, {sJ}, 192\n'
    for k in range(3): t+=f'buffer_load_ushort v{BIA+k}, v{a}, {sB1}, s45 offen offset:{64*k}\n'
    return t
def stats_a(p):
    S=TMP+4
    for i in (1,3):
        for k in range(4): p(f'v_add_f32 v{S+4*(i-1)+k}, v{S+4*(i-1)+k}, v{S+4*i+k}')
    for k in range(4): p(f'v_add_f32 v{S+k}, v{S+k}, v{S+8+k}')
    p(f'''s_mul_i32 s48, {sW}, {CS_P}
    s_add_u32 s48, s48, {L_CS}
    v_add_u32 v{CSA}, s48, v{CSA}
    ds_write_b128 v{CSA}, {vr(S)}
    v_and_b32 v{TMP}, 31, v0
    v_lshlrev_b32 v{TMP}, 2, v{TMP}
    v_add_u32 v{TMP}, {L_CS}, v{TMP}
    v_mov_b32 v{RSTD}, v{SX+3}
    v_mov_b32 v{SX+3}, 0
    v_mul_f32 v{RL}, {f32(LOG2E)}, v{RSTD}
    v_mul_f32 v{M2R}, -2.0, v{RSTD}''')
    hm=TMP+1; z=TMP+2; one=TMP+3
    p(f'''v_cmp_gt_u32 vcc, 32, v0
    v_mov_b32 v{z}, 0
    v_cndmask_b32 v{hm}, 0, 1.0, vcc
    s_mov_b32 s48, 0xff000000
    s_mov_b32 s49, 0
    v_cndmask_b32 v{one}, 0, 1.0, s[48:49]''')
    for t in range(3): p(f'v_lshlrev_b32 v{BIA+t}, 16, v{BIA+t}\nv_mul_f32 v{BIA+t}, v{BIA+t}, v{hm}')
    for r in range(16): p(f'v_mul_f32 v{RLC+r}, {f32(LOG2E)}, v{RSC+r}')
def stats_b(st,tiles,g):
    hm=TMP+1; z=TMP+2; one=TMP+3
    for t in tiles:
        for w in range(4): st.add(f'ds_read_b32 v{SWB+4*t+w}, v{TMP} offset:{CS_P*w+128*t}',g)
    g+=3+len(tiles)
    for ops in ('v_add_f32 v{B}, v{B}, v{B1}\nv_add_f32 v{B2}, v{B2}, v{B3}','v_add_f32 v{B2}, v{B}, v{B2}','v_mul_f32 v{B2}, v{B2}, v{hm}',
                'v_cvt_pk_bf16_f32 v{B}, v{B2}, v{B2}','v_lshlrev_b32 v{B3}, 16, v{B}','v_sub_f32 v{B2}, v{B2}, v{B3}',
                'v_cvt_pk_bf16_f32 v{B1}, v{B2}, v{bias}\nv_mov_b32 v{B3}, 0','v_cvt_pk_bf16_f32 v{B2}, v{bias}, v{z}'):
        for t in tiles:
            B=SWB+4*t; bias=BIA+t if t<3 else (one if t==5 else z)
            st.add(ops.format(B=B,B1=B+1,B2=B+2,B3=B+3,hm=hm,bias=bias,z=z),g)
def mish_stream(st, gate):
    k=0
    for t in range(3):
        for rq in range(2):
            PK=TMP+16+4*(k&1); k+=1
            for g in range(2):
                A=ACW+16*t+8*rq+4*g; E=TMP+8*g; Uu=E+4
                for op in ('v_mul_f32 v{e}, v{a}, v{RL}','v_exp_f32 v{e}, v{e}','v_add_f32 v{u}, 2.0, v{e}','v_fma_f32 v{e}, v{e}, v{u}, 2.0',
                           'v_rcp_f32 v{e}, v{e}','v_fma_f32 v{e}, v{e}, v{M2R}, v{RSTD}','v_mul_f32 v{e}, v{a}, v{e}'):
                    for i in range(4): st.add(op.format(e=E+i,u=Uu+i,a=A+i,RL=RL,M2R=M2R,RSTD=RSTD),gate)
                st.add(f'v_cvt_pk_bf16_f32 v{PK+2*g}, v{E}, v{E+1}\nv_cvt_pk_bf16_f32 v{PK+2*g+1}, v{E+2}, v{E+3}',gate)
            st.add(f'buffer_store_dwordx4 {vr(PK)}, v{ACTO}, {sWS}, {sACT} offen offset:{(4*t+2*rq)*256} sc1 ;#act',gate)
def phi_ops(st, gate, A, rs, rl, E, Uu, dst):
    for i in range(4): st.add(f'v_mul_f32 v{E+i}, v{A+i}, v{rl(i)}',gate)
    for i in range(4): st.add(f'v_exp_f32 v{E+i}, v{E+i} clamp',gate)
    for i in range(4): st.add(f'v_fma_f32 v{Uu+i}, v{A+i}, v{rs(i)}, {sC1}',gate)
    for i in range(4): st.add(f'v_add_f32 v{E+i}, {sEPS}, v{E+i}',gate)
    for i in range(4): st.add(f'v_max_f32 v{E+i}, v{E+i}, v{Uu+i}',gate)
    st.add(f'v_cvt_pk_bf16_f32 v{dst}, v{E}, v{E+1}\nv_cvt_pk_bf16_f32 v{dst+1}, v{E+2}, v{E+3}',gate)
def kv_stream(st, gate):
    k=0
    for tile,AC in ((1,ACV),(0,ACK),(2,ACR)):
        for ks in range(2):
            PK=TMP+16+4*(k&1); k+=1
            for g in range(2):
                r0=8*ks+4*g; A=AC+r0; E=TMP+8*g; Uu=E+4
                if tile==0: phi_ops(st,gate,A,lambda i:RSC+r0+i,lambda i:RLC+r0+i,E,Uu,PK+2*g)
                elif tile==1:
                    for i in range(4): st.add(f'v_mul_f32 v{E+i}, v{A+i}, v{RSC+r0+i}',gate)
                    st.add(f'v_cvt_pk_bf16_f32 v{PK+2*g}, v{E}, v{E+1}\nv_cvt_pk_bf16_f32 v{PK+2*g+1}, v{E+2}, v{E+3}',gate)
                else:
                    for i in range(4): st.add(f'v_mul_f32 v{E+i}, v{A+i}, v{RLC+r0+i}',gate)
                    for i in range(4): st.add(f'v_exp_f32 v{E+i}, v{E+i} clamp',gate)
                    for i in range(4): st.add(f'v_mul_f32 v{A+i}, v{A+i}, v{RSC+r0+i}',gate)
                    for i in range(4): st.add(f'v_add_f32 v{E+i}, {sEPS}, v{E+i}',gate)
                    for i in range(4): st.add(f'v_add_f32 v{Uu+i}, {sC1}, v{A+i}',gate)
                    for i in range(4): st.add(f'v_max_f32 v{E+i}, v{E+i}, v{Uu+i}',gate)
                    for i in range(4): st.add(f'v_cndmask_b32 v{E+i}, v{E+i}, v{A+i}, {sMV}',gate)
                    st.add(f'v_cvt_pk_bf16_f32 v{PK+2*g}, v{E}, v{E+1}\nv_cvt_pk_bf16_f32 v{PK+2*g+1}, v{E+2}, v{E+3}',gate)
            st.add(f'ds_write_b128 v{EXW}, {vr(PK)} offset:{2048*tile+1024*ks} ;#ex',gate)
def w1_pass(p):
    mf=[]; reads=[]; fr=0
    for ks in range(40):
        s=ks//4; q=ks%4; sl=slot(s); g=grp(sl); o=(sl%2)*SLOT
        reads.append((f'ds_read_b128 {ar(4*ks)}, v{XR(g,q)} offset:{o} ;#rd{s}',s,len(mf)))
        for t in range(3):
            b=POOL+4*(fr%NP); fr+=1; off=o+16384+q*3072+64*t
            reads.append((f'ds_read_b64_tr_b16 {ar(b,2)}, v{W1R(g)} offset:{off} ;#rd{s}\nds_read_b64_tr_b16 {ar(b+2,2)}, v{W1R(g)} offset:{off+768} ;#rd{s}',s,len(mf)))
            D=vr(ACW+16*t,16)
            mf.append(f'{M32} {D}, {ar(b)}, {ar(4*ks)}, {"0" if ks==0 else D}')
    dma=Stream(); fil=Stream()
    addr_wc(fil); addr_kv(fil); addr_p2(fil)
    def mkopen(s):
        def f(m):
            flush(p,dma)
            if s==9: flush(p,fil)
            head=st_(f'a{s}')+(f'@lgwait rd{s-1}\n' if s>0 else '@lgwait pro\n')+f'@vmwait st{s}\n'
            if s==OPT['sig']: head+='@vmwait dbg\n'
            head+=st_(f'v{s}')+'s_barrier\n'+st_(f'b{s}')
            if s<=5:
                for t in dma_stage(s+4,'loads'): dma.add(t,glue=True)
            if s<5:
                for t in dma_stage(s+5,'pre'): dma.add(t,glue=True)
            if s==OPT['sig']:
                head+=f'v_readfirstlane_b32 s58, v{TMP+23}\n'
                head+=fallback('dbg',f'v_mov_b32 v{TMP+22}, 0\nbuffer_load_dword v{TMP+23}, v{TMP+22}, {sDBG}, 0 offen sc1\ns_waitcnt vmcnt(0)\nv_readfirstlane_b32 s58, v{TMP+23}','s_cmp_lg_u32 s58, 0')
                head+=f'\nbuffer_store_dword v{VAL}, v{SIG}, {sWS}, 0 offen sc1\n'+st_('sig1')
            if s==OPT['pp']:
                head+=poll1_addr()+f'\nbuffer_load_dword v{POLL1}, v{POLL1A}, {sWS}, 0 offen sc1 ;#poll1\n'
            if s==max(OPT['pp'],6):
                for t in wc_loads(): dma.add(t,glue=True)
            if s==9:
                head+=h1_check()
            return head
        return f
    opens={s:mkopen(s) for s in range(10)}
    for t in dma_stage(4,'pre'): p(t)
    run_pass(p,mf,reads,opens,[fil],pre=dma,depth=OPT['depth'],delay=OPT['delay'],maxrd=OPT['maxrd'])
    return fr
def h1_check():
    t='@vmwait poll1\n'+fallback('h1',f'buffer_load_dword v{POLL1}, v{POLL1A}, {sWS}, 0 offen sc1',
                                  f'v_cmp_ne_u32 s[58:59], 0, v{POLL1}\ns_nop 1\ns_cmp_eq_u64 s[58:59], -1')
    if OPT['xtest']: t+=f'\nv_readlane_b32 s58, v{POLL1}, 16\ns_nop 3\nv_cmp_eq_u32 s[58:59], s58, v{POLL1}\ns_nop 3\ns_and_b32 s58, s58, 0x00ff0000\ns_cmp_eq_u32 s58, 0x00ff0000\ns_cselect_b32 s84, 0, 1\n'
    t+='\n'+st_('h1ok')+stats_issue()
    for s in (10,11,12): t+='\n'.join(dma_stage(s))+'\n'
    return t
def bubble(p):
    p(st_('w1done'))
    addr_r(p)
    for t in wc_work(p): p(t)
    stats_a(p)
def kvq_pass(p,fr):
    mf=[]; reads=[]; hooks={}
    dma=Stream(); scs=Stream(); st1=Stream()
    mc=OPT['mc']
    def rd(text,s): reads.append((text,s,len(mf)))
    for ks in range(40):
        s=10+ks//8; sl=slot(s); g=grp(sl); o=(sl%2)*SLOT
        for t,AC in enumerate((ACK,ACV,ACR)):
            if len(mf)==mc:
                hooks[mc-1]=lambda m:(flush(p,scs),'')[1]
                for tt in range(3):
                    D=vr(ACW+16*tt,16); mf.append(f'{M32} {D}, {vr(SWB+4*tt)}, {vr(SX)}, {D}')
            b=POOL+4*(fr%NP); fr+=1
            rd(f'ds_read_b128 {ar(b)}, v{LIN(g)} offset:{o+(3*(ks%8)+t)*1024} ;#rd{s}',s)
            D=vr(AC,16); mf.append(f'{M32} {D}, {ar(4*ks)}, {ar(b)}, {"0" if ks==0 else D}')
    def chk(m):
        assert len(st1.q)<=nleft, 'column-sum operands not ready'
        print('left in st1 at kv end',len(st1.q),'kv items',nkv,file=sys.stderr)
        return ''
    hooks[len(mf)-1]=chk
    for t,AC in ((1,ACV),(0,ACK),(2,ACR)):
        D=vr(AC,16); mf.append(f'{M32} {D}, {vr(SX)}, {vr(SWB+12+4*t)}, {D}')
    mf[-1]+='\n'+st_('kvdone')
    g_kv=len(mf)+1
    for ks in range(40):
        s=15+ks//16; sl=slot(s); g=grp(sl); o=(sl%2)*SLOT
        b=POOL+4*(fr%NP); fr+=1
        rd(f'ds_read_b128 {ar(b)}, v{LIN(g)} offset:{o+(ks%16)*1024} ;#rd{s}',s)
        D=vr(ACQ,16); mf.append(f'{M32} {D}, {ar(b)}, {ar(4*ks)}, {"0" if ks==0 else D}')
    D=vr(ACQ,16); mf.append(f'{M32} {D}, {vr(SWB+24)}, {vr(SX)}, {D}')
    def mkopen(s):
        def f(m):
            flush(p,dma)
            head=st_(f'a{s}')+(f'@lgwait rd{s-1}\n' if s>10 else '@wait lg\n')+f'@vmwait st{s}\n'
            if s==13: head+='@vmwait wcst\n'
            head+=st_(f'v{s}')+'s_barrier\n'+st_(f'b{s}')
            if s==10:
                head+=st_('kvstart')
                for x in (13,14):
                    for t in dma_stage(x): dma.add(t,glue=True)
                stats_b(scs,(0,1,2),0)
            elif s<=13:
                for t in dma_stage(s+4): dma.add(t,glue=True)
            if s==13:
                head+=f'''s_lshl_b32 s58, {sC}, 5
                s_add_u32 s58, s58, {sTT}
                s_lshl_b32 s58, s58, 2
                s_add_u32 s58, s58, 4096
                s_cmp_eq_u32 {sW}, 0
                s_cselect_b32 s58, s58, {sOOB}
                v_mov_b32 v{XD[0]}, {sOOB}
                v_writelane_b32 v{XD[0]}, s58, 0
                buffer_store_dword v{VAL}, v{XD[0]}, {sWS}, 0 offen sc1
                '''
            return head
        return f
    opens={s:mkopen(s) for s in range(10,18)}
    g=mc+4
    st1.add(f'buffer_store_dwordx4 {vr(NEG)}, v{ACTO}, {sWS}, {sOST} offen sc1 ;#act\nbuffer_store_dwordx4 {vr(NEG)}, v{ACTO}, {sWS}, {sOST} offen offset:512 sc1 ;#act',0)
    st1.add(f's_mov_b32 exec_hi, 0\nbuffer_store_dwordx4 {vr(NEG)}, v{ACTO}, {sWS}, {sOST} offen offset:1024 sc1 ;#act\ns_mov_b32 exec_hi, -1',0,glue=True)
    stats_b(st1,(3,4,5,6),mc-4); n0=len(st1.q)
    mish_stream(st1,g); n1=len(st1.q); kv_stream(st1,g_kv); nleft=len(st1.q)-n0; nkv=len(st1.q)-n1
    run_pass(p,mf,reads,opens,[scs,st1],pre=dma,depth=OPT['kdepth'],delay=OPT['delay'],maxrd=3,hooks=hooks)
CPA=XD[0]; CPV=XD[1]
def p1_tail(p):
    p('@wait lg\ns_barrier\n'+st_('exch'))
    for u in range(4):
        for ks in range(2):
            k=2*u+ks
            p(f'ds_read_b128 {ar(POOL+8*k)}, v{EXA} offset:{6144*u+1024*ks}\nds_read_b128 {ar(POOL+8*k+4)}, v{EXB} offset:{6144*u+1024*ks}')
    p(f'ds_read_b64_tr_b16 {vr(QP+8,2)}, v{EXT}\nds_read_b64_tr_b16 {vr(QP+10,2)}, v{EXT} offset:64')
    p(f'''s_lshl_b32 s58, {sC}, 7
    s_add_u32 s58, s58, 4096
    v_and_b32 v{CPA}, 31, v0
    v_lshl_add_u32 v{CPA}, v{CPA}, 2, s58
    buffer_load_dword v{CPV}, v{CPA}, {sWS}, 0 offen sc1 ;#cpoll
    ds_write_b128 v{A2Z}, {vr(ZER)}''')
    KD=ACR; D=vr(KD,16)
    st=Stream()
    for g in range(4): phi_ops(st,0,ACQ+4*g,lambda i:RSTD,lambda i:RL,TMP+8*(g&1),TMP+8*(g&1)+4,QP+2*g)
    mf=[f'{M32} {D}, {ar(POOL+8*k)}, {ar(POOL+8*k+4)}, {"0" if k==0 else D}' for k in range(8)]
    run_pass(p,mf,[],{},[st],drain=False)
    for _ in range(12):
        if st.q: p.extend(st.q.pop(0)[1])
    for q in range(4):
        p(f'v_min_u32 v{KD+4*q}, -2, v{KD+4*q}\nbuffer_store_dwordx4 {vr(KD+4*q)}, v{KVO+q}, {sWS}, {sKVP} offen sc1 ;#kvp')
    p(st_('kvst'))
    p('@vmwait cpoll\n'+fallback('c',f'buffer_load_dword v{CPV}, v{CPA}, {sWS}, 0 offen sc1',
                                  f'v_cmp_ne_u32 s[58:59], 0, v{CPV}\ns_nop 1\ns_cmp_eq_u64 s[58:59], -1'))
    p(f'''v_mov_b32 v{VAL}, 3
    @wait lg
    s_barrier
    buffer_store_dword v{VAL}, v{SIG}, {sWS}, 0 offen sc1''')
    return st
WS_=lambda k:(ar(20*k) if k<8 else None)
def wslot(k):
    tab={8:('v',100),9:('v',136),10:('a',0),11:('a',20),12:('a',40),13:('a',60),14:('a',80),15:('a',100),16:('a',120)}
    f,b=tab.get(k,('a',20*k))
    return lambda n:f'{f}[{b+4*n}:{b+4*n+3}]'
def xslot(k):
    tab={0:('a',160),1:('a',176),2:('a',192),3:('a',208),4:('a',224),5:('a',240),6:('v',164),7:('v',180),
         8:('v',120),9:('v',196),10:('v',212),11:('a',160),12:('a',176),13:('a',192),14:('a',208),15:('a',224),16:('a',240)}
    f,b=tab[k]
    return lambda t:f'{f}[{b+4*t}:{b+4*t+3}]'
def wload(k):
    base,kk=(sWA,k) if k<12 else (sWO2,k-12)
    w=wslot(k); out=[]
    for n in range(5):
        pre=(f's_add_u32 s45, {base}, {kk*5120}\n' if n==0 else '')
        out.append(pre+f'buffer_load_dwordx4 {w(n)}, v{WOF[n//4]}, {sWS}, s45 offen offset:{1024*(n%4)} sc1')
    return out
def xload(k,tag=''):
    base,kk=(sXA,k) if k<12 else (sXO,k-12)
    x=xslot(k); out=[]
    for t in range(4):
        pre=(f's_add_u32 s46, {base}, {(kk//4)*4096}\n' if t==0 else '')
        out.append(pre+f'buffer_load_dwordx4 {x(t)}, v{XO[t]}, {sWS}, s46 offen offset:{1024*(kk%4)} sc1{tag}')
    return out
def r_loads():
    t=f's_mul_i32 s47, {sJ}, {16*KV_P}\ns_add_u32 s47, s47, {WS_KV}\n'
    for i in range(16):
        t+=f'buffer_load_dwordx4 {vr(RB+4*i)}, v{RQ}, {sWS}, s47 offen offset:{KV_P*(i&1)} sc1 ;#rl\n'
        if i&1 and i<15: t+=f's_add_u32 s47, s47, {2*KV_P}\n'
    return t
def r_test():
    a=TMP
    t=f'v_max3_u32 v{a}, v{RB}, v{RB+4}, v{RB+8}\n'
    for i in range(3,15,2): t+=f'v_max3_u32 v{a}, v{a}, v{RB+4*i}, v{RB+4*i+4}\n'
    t+=f'v_max_u32 v{a}, v{a}, v{RB+60}\nv_cmp_eq_u32 s[58:59], -1, v{a}\ns_nop 1\ns_cmp_eq_u64 s[58:59], 0'
    return t
def p2_front(p,st):
    for k in range(OPT['wpre']):
        for t in wload(k):
            p(t)
            for _ in range(2):
                if st.q: p.extend(st.q.pop(0)[1])
    flush(p,st)
    p(f'''s_lshr_b32 s47, {sTT}, 1
    s_lshl_b32 s47, s47, 7
    s_load_dwordx16 s[48:63], s[32:33], s47
    s_waitcnt lgkmcnt(0)''')
    t=''
    for i in range(50,64,2): t+=f's_and_b64 s[48:49], s[48:49], s[{i}:{i+1}]\n'
    t+='s_and_b32 s48, s48, s49\ns_bitcmp1_b32 s48, 1'
    fallbacks.append(f'''L_fb_h2:
    s_mov_b32 s3, 0
    v_and_b32 v{CPA}, 15, v0
    v_lshl_add_u32 v{CPA}, v{CPA}, 2, s47
    L_fbl_h2:
    buffer_load_dword v{CPV}, v{CPA}, {sWS}, 0 offen sc1
    s_waitcnt vmcnt(0)
    v_cmp_eq_u32 s[58:59], 3, v{CPV}
    s_nop 1
    s_cmp_eq_u64 s[58:59], -1
    s_cbranch_scc1 L_ok_h2
    s_add_u32 s3, s3, 1
    s_cmp_lt_u32 s3, {BOUND}
    s_cbranch_scc1 L_fbl_h2
    s_branch L_ok_h2''')
    p(t+'\ns_cbranch_scc0 L_fb_h2\nL_ok_h2:\n'+st_('h2ok'))
    p(r_loads())
    for k in range(OPT['wpre'],8):
        for t in wload(k): p(t)
    for k in range(8):
        for t in xload(k): p(t)
def r_work(p):
    B=RB
    p('@vmwait rl\n'+fallback('r',r_loads(),r_test())+'\n'+st_('rok'))
    n=16
    while n>1:
        n//=2
        for i in range(n):
            for k in range(4): p(f'v_add_f32 v{B+4*i+k}, v{B+4*i+k}, v{B+4*(i+n)+k}')
    p(f'''v_cvt_pk_bf16_f32 v{B+4}, v{B}, v{B+1}
    v_cvt_pk_bf16_f32 v{B+5}, v{B+2}, v{B+3}
    ds_write_b64 v{RWA}, {vr(B+4,2)}
    @wait lg
    s_barrier''')
    F=B+8; DA=B+24; DB=B+40
    for f in range(4): p(f'ds_read_b128 {vr(F+4*f)}, v{RRA} offset:{32*f}')
    p(f'''{M32} {vr(DA,16)}, {vr(F)}, {vr(QP)}, 0
    {M32} {vr(DB,16)}, {vr(F+8)}, {vr(QP+4)}, 0
    {M32} {vr(DA,16)}, {vr(F+4)}, {vr(QP+4)}, {vr(DA,16)}
    {M32} {vr(DB,16)}, {vr(F+12)}, {vr(QP+8)}, {vr(DB,16)}''')
    for n in range(5): p(f'buffer_load_dwordx2 {vr(RES+2*n,2)}, v{RESA}, {sX}, {sRO} offen offset:{32*n}')
    for D in (DA,DB):
        p(f'v_add_f32 v{D+12}, {sEPS}, v{D+12}\nv_rcp_f32 v{D+12}, v{D+12}')
    for k,D in enumerate((DA,DB)):
        for r in range(12): p(f'v_mul_f32 v{D+r}, v{D+r}, v{D+12}')
        for i in range(4): p(f'v_cvt_pk_bf16_f32 v{F+4*k+i}, v{D+2*i}, v{D+2*i+1}')
        for i in range(2): p(f'v_cvt_pk_bf16_f32 v{F+8+2*k+i}, v{D+8+2*i}, v{D+9+2*i}')
        p(f'v_min_u32 v{F+4*k}, -2, v{F+4*k}')
        p(f'buffer_store_dwordx4 {vr(F+4*k)}, v{ACTO}, {sWS}, {sOST} offen offset:{512*k} sc1 ;#o')
    p(f'''v_min_u32 v{F+8}, -2, v{F+8}
    s_mov_b32 exec_hi, 0
    buffer_store_dwordx4 {vr(F+8)}, v{ACTO}, {sWS}, {sOST} offen offset:1024 sc1 ;#o
    s_mov_b32 exec_hi, -1''')
    p(st_('rdone'))
def o_test():
    a=TMP+0; t=''
    regs=[]
    first=True
    E=100
    for k in range(12,17):
        x=xslot(k)
        for tt in range(4):
            b=int(x(tt).split('[')[1].split(':')[0])
            t+=f'v_accvgpr_read_b32 v{E+len(regs)}, a{b}\n'; regs.append(E+len(regs))
    t+=f'v_max3_u32 v{E}, v{E}, v{E+1}, v{E+2}\n'
    for i in range(3,19,2): t+=f'v_max3_u32 v{E}, v{E}, v{E+i}, v{E+i+1}\n'
    t+=f'v_max_u32 v{E}, v{E}, v{E+19}\nv_cmp_eq_u32 s[58:59], -1, v{E}\ns_nop 1\ns_cmp_eq_u64 s[58:59], 0'
    return t
def p2_main(p):
    for t in wload(8)+xload(8)+wload(9)+xload(9)+xload(10): p(t)
    st=Stream()
    def mfs(k):
        w=wslot(k); x=xslot(k)
        return [f'{M16} {vr(ACC+4*(4*n+t))}, {w(n)}, {x(t)}, {"0" if k==0 else vr(ACC+4*(4*n+t))}' for t in range(4) for n in range(5)]
    mf=[]
    after={0:wload(10)+xload(11),1:wload(11),2:wload(12),3:wload(13),4:wload(14),5:wload(15),6:wload(16)}
    ol=[t for k in range(12,17) for t in xload(k,' ;#ol')]
    after[OPT['go']]=after.get(OPT['go'],[])+ol
    for k in range(12):
        mf+=mfs(k); mf[-1]+='\n'+st_(f'k{k}')
        for t in after.get(k,[]): st.add(t,len(mf)-1,glue=True)
    run_pass(p,mf,[],{},[st],slots=2,vec=8)
    p(st_('actdone'))
    p('@vmwait ol\n'+fallback('o','\n'.join(ol).replace(' ;#ol',''),o_test())+'\n'+st_('ook'))
    for k in range(12,17): p('\n'.join(mfs(k)))
def p2_tail(p):
    a=196; S=100
    for t in range(4):
        p(f'''s_sub_u32 s45, {sW}, {t+1}
        s_and_b32 s45, s45, 3
        s_mul_i32 s45, s45, 5120
        s_add_u32 s45, s45, {t*4*5120}
        v_add_u32 v{a+t}, s45, v{LIN(0)}''')
    p(f'''s_mul_i32 s45, {sW}, {4*5120}
    v_add_u32 v{a+4}, s45, v{LIN(0)}''')
    p(st_('p2done'))
    for t in range(4):
        for n in range(5): p(f'ds_write_b128 v{a+t}, {vr(ACC+4*(4*n+t))} offset:{1024*n}')
    p('@wait lg\ns_barrier')
    for n in range(5):
        for u in range(4): p(f'ds_read_b128 {vr(S+20*u+4*n)}, v{a+4} offset:{5120*u+1024*n}')
    for n in range(5):
        R=S+4*n
        for k in range(2):
            p(f'v_lshlrev_b32 v{ACC+4*n+2*k}, 16, v{RES+2*n+k}\nv_and_b32 v{ACC+4*n+1+2*k}, 0xffff0000, v{RES+2*n+k}')
        for k in range(4):
            p(f'v_add_f32 v{R+k}, v{R+k}, v{R+20+k}\nv_add_f32 v{R+40+k}, v{R+40+k}, v{R+60+k}')
        for k in range(4): p(f'v_add_f32 v{R+k}, v{R+k}, v{R+40+k}')
        for k in range(4): p(f'v_add_f32 v{R+k}, v{R+k}, v{ACC+4*n+k}')
        p(f'''v_cvt_pk_bf16_f32 v{R}, v{R}, v{R+1}
        v_cvt_pk_bf16_f32 v{R+1}, v{R+2}, v{R+3}
        buffer_store_dwordx2 {vr(R,2)}, v{RESA}, {sOUT}, {sRO} offen offset:{32*n} {OPT['osc'].replace('+',' ')}''')
HDR=open('parallel_sum__linear_attn_block__dense_activation_mish__prompt.s.ref').read().split('; Override')[0]
def build(prof=False,lst=False):
    PROF['on']=prof; PROF['n']=0; PROF['names']=[]; del fallbacks[:]
    p=Prog(); p(st_('start')); startup(p)
    for s in range(4):
        for t in dma_stage(s): p(t)
    addr_p1lds(p); p(st_('issued'))
    prologue_work(p); p(st_('pst'))
    fr=w1_pass(p); bubble(p); kvq_pass(p,fr)
    st=p1_tail(p); p2_front(p,st); r_work(p); p2_main(p); p2_tail(p)
    p(st_('tail'))
    if OPT['xtest']: p(f'''s_cmp_eq_u32 s84, 0
    s_cbranch_scc1 L_xt
    s_memrealtime s[86:87]
    s_waitcnt lgkmcnt(0)
    s_add_u32 s88, s86, {OPT['xtest']}
    L_xl:
    s_memrealtime s[86:87]
    s_waitcnt lgkmcnt(0)
    s_sub_u32 s89, s86, s88
    s_cmp_lt_i32 s89, 0
    s_cbranch_scc1 L_xl
    L_xt:''')
    if OPT['spin']:
        if OPT['amp']=='drained': p('@wait vm'); p(st_('drained'))
        p('s_waitcnt lgkmcnt(0)')
        if OPT['amp']: p(f's_sub_u32 s90, s90, s84\ns_min_u32 s90, s90, 20000\ns_add_u32 s88, s84, s90\ns_add_u32 s88, s88, {OPT["spin"]}')
        else: p(f's_add_u32 s88, s84, {OPT["spin"]}')
        p('''L_xl:
        s_memrealtime s[86:87]
        s_waitcnt lgkmcnt(0)
        s_sub_u32 s89, s86, s88
        s_cmp_lt_i32 s89, 0
        s_cbranch_scc1 L_xl''')
    if prof: p('@wait vm'); p(st_('drained')); prof_flush(p,0)
    p('s_endpgm')
    lines,stats=finalize(p.items); print(len(lines),stats,file=sys.stderr)
    q=Prog()
    fb='\n'.join(fallbacks)
    lines+=['.p2align 6']
    for ln in fb.split('\n'):
        ln=ln.strip()
        if not ln: continue
        lines.append(ln)
    lines+=['L_end:','s_endpgm']
    name='k0_kernel' if lst else KN
    txt=HDR
    txt+=(f'; @launch kernel={name} grid=(256,1,1) block=(256,1,1) lds={LDS_BYTES}\n' if lst else f'; @launch grid=(256,1,1) block=(256,1,1) lds={LDS_BYTES}\n')
    txt+='.amdgcn_target "amdgcn-amd-amdhsa--gfx950"\n.text\n'+kernel_text(name,lines)
    txt+='.section .rodata,"a"\n.p2align 6\n'+descriptor(name)
    return txt
if __name__=='__main__':
    out=sys.argv[1]; prof=False
    for a in sys.argv[2:]:
        k,v=a.split('=')
        OPT[k]=v if k in('stamps','amp','osc') else int(v)
    prof=bool(OPT['stamps'])
    open(out,'w').write(build(prof,lst=bool(OPT.get('lst',0))))
    if prof: json.dump(PROF['all'],open(out+'.json','w'))
```
